```python
import torch

def _softmax(x, axis=-1):
    return torch.softmax(x, dim=axis)
def _gelu(x):
    return torch.nn.functional.gelu(x, approximate="tanh")
def _silu(x):
    return torch.nn.functional.silu(x)
def _sigmoid(x):
    return torch.sigmoid(x)
def _layernorm(x, axis=-1, eps=1e-5):
    m = x.mean(dim=axis, keepdim=True)
    v = x.var(dim=axis, keepdim=True, unbiased=False)
    return (x - m) / torch.sqrt(v + eps)
def _scatter_add(tgt, idx, src, axis=0):
    return tgt.clone().index_add_(axis, idx, src)
def _segment_sum(src, seg, n):
    out = torch.zeros((n,) + src.shape[1:], dtype=src.dtype)
    return out.index_add_(0, seg, src)
def _pad(x, pw):
    flat = tuple(v for pair in reversed(pw) for v in pair)
    return torch.nn.functional.pad(x, flat)

kernel_name = 'interleave_layers__gqa_block_cached__mixer_token_mlp__decode'

def setup_inputs():

    _w = (lambda a: (lambda t: t.to(torch.bfloat16) if t.is_floating_point() else t)(torch.as_tensor(a)))
    def _A_setup():
        B, Sq, D = 8, 1, 448
        Hq, Hkv, Sk, Dh = 16, 8, 8192, 256
        assert Hq % Hkv == 0, (Hq, Hkv)
        return {
            "x": _w((lambda *s: torch.randn(*s, dtype=torch.bfloat16) * 0.05)(B, Sq, D)),
            "k_cache": _w((lambda *s: torch.randn(*s, dtype=torch.bfloat16) * 0.8)(B, Hkv, Sk, Dh)),
            "v_cache": _w((lambda *s: torch.randn(*s, dtype=torch.bfloat16) * 1.6)(B, Hkv, Sk, Dh)),
            "wq": _w((lambda *s: torch.randn(*s, dtype=torch.bfloat16) * 0.8)(D, Hq * Dh) * (D ** -0.5)),
            "wo": _w((lambda *s: torch.randn(*s, dtype=torch.bfloat16) * 1.6)(Hq * Dh, D) * ((Hq * Dh) ** -0.5)),
        }
    _A_in = _A_setup()

    def _B_setup():
        B, S, D, F = 8, 1, 448, 1792
        return {
            "x": _w((lambda *s: torch.randn(*s, dtype=torch.bfloat16) * 0.05)(B, S, D)),
            "w1": _w((lambda *s: torch.randn(*s, dtype=torch.bfloat16) * 0.8)(S, F) * (S ** -0.5)),
            "b1": _w((lambda *s: torch.randn(*s, dtype=torch.bfloat16) * 0.8)(F) * 0.02),
            "w2": _w((lambda *s: torch.randn(*s, dtype=torch.bfloat16) * 0.2)(F, S) * (F ** -0.5)),
            "b2": _w((lambda *s: torch.randn(*s, dtype=torch.bfloat16) * 0.2)(S) * 0.02),
        }
    _B_in = _B_setup()

    return {
        "A_x": _A_in["x"],
        "A_k_cache": _A_in["k_cache"],
        "A_v_cache": _A_in["v_cache"],
        "A_wq": _A_in["wq"],
        "A_wo": _A_in["wo"],
        "B_x": _B_in["x"],
        "B_w1": _B_in["w1"],
        "B_b1": _B_in["b1"],
        "B_w2": _B_in["w2"],
        "B_b2": _B_in["b2"],
    }

def reference(A_x, A_k_cache, A_v_cache, A_wq, A_wo, B_x, B_w1, B_b1, B_w2, B_b2):
    def _A_ref(x, k_cache, v_cache, wq, wo):
        B, Sq, D = x.shape
        Hq, Dh = 16, 256
        Hkv = k_cache.shape[1]
        rep = Hq // Hkv
        q = (lambda x, *d: x.permute(*d))((x @ wq).reshape(B, Sq, Hq, Dh), 0, 2, 1, 3)
        k = (lambda x, n, axis: torch.repeat_interleave(x, n, dim=axis))(k_cache, rep, axis=1)
        v = (lambda x, n, axis: torch.repeat_interleave(x, n, dim=axis))(v_cache, rep, axis=1)
        scores = torch.einsum("bhqd,bhkd->bhqk", q, k) * (Dh ** -0.5)
        p = _softmax(scores, axis=-1)
        o = torch.einsum("bhqk,bhkd->bhqd", p, v)
        return (lambda x, *d: x.permute(*d))(o, 0, 2, 1, 3).reshape(B, Sq, Hq * Dh) @ wo

    def _B_ref(x, w1, b1, w2, b2):
        B, S, D = x.shape
        h = _layernorm(x, axis=-1)
        u = torch.einsum("bsd,sf->bdf", h, w1) + b1
        u = _gelu(u)
        y = torch.einsum("bdf,fs->bds", u, w2) + b2
        return (lambda x, *d: x.permute(*d))(y, 0, 2, 1)

    x = A_x
    x = x + _A_ref(_layernorm(x, axis=-1), A_k_cache, A_v_cache, A_wq, A_wo)
    x = x + _B_ref(_layernorm(x, axis=-1), B_w1, B_b1, B_w2, B_b2)
    x = x + _A_ref(_layernorm(x, axis=-1), A_k_cache, A_v_cache, A_wq, A_wo)
    x = x + _B_ref(_layernorm(x, axis=-1), B_w1, B_b1, B_w2, B_b2)
    return x
```

```python
import re

_REG = re.compile(r'^(-|\|)?(?:abs\()?([vas])(?:(\d+)|\[(\d+):(\d+)\])\)?\|?$')

def regs_of(tok):
    t = tok.strip()
    if t in ('vcc',): return {('s', 106), ('s', 107)}
    if t == 'vcc_lo': return {('s', 106)}
    if t == 'vcc_hi': return {('s', 107)}
    if t == 'exec': return {('s', 126), ('s', 127)}
    if t == 'exec_lo': return {('s', 126)}
    if t == 'exec_hi': return {('s', 127)}
    if t == 'm0': return {('s', 124)}
    m = _REG.match(t)
    if not m: return set()
    f = m.group(2)
    if m.group(3) is not None:
        return {(f, int(m.group(3)))}
    return {(f, i) for i in range(int(m.group(4)), int(m.group(5)) + 1)}

def split_ops(s):
    ops, depth, cur = [], 0, ''
    for ch in s + ',':
        if ch in '[(': depth += 1
        elif ch in '])': depth -= 1
        if ch == ',' and depth == 0:
            ops.append(cur.strip()); cur = ''
        else: cur += ch
    return [o for o in ops if o]

TRANS = ('v_exp_f32', 'v_log_f32', 'v_rcp_f32', 'v_rsq_f32', 'v_sqrt_f32', 'v_sin_f32', 'v_cos_f32')
VCC = {('s', 106), ('s', 107)}

class Insn:
    def __init__(self, text):
        self.text = text
        parts = text.split(None, 1)
        self.mn = parts[0]
        rest = parts[1] if len(parts) > 1 else ''
        raw = split_ops(rest)
        self.mods = []
        ops = []
        for o in raw:
            p = o.split()
            ops.append(p[0]); self.mods += p[1:]
        self.ops = ops
        mn = self.mn
        self.is_mfma = mn.startswith('v_mfma')
        self.is_valu = mn.startswith('v_') and not self.is_mfma
        self.is_salu = mn.startswith('s_')
        self.is_ds = mn.startswith('ds_')
        self.is_vmem = mn.startswith(('buffer_', 'global_', 'flat_'))
        self.is_dpp = any(m.startswith(('quad_perm', 'row_', 'wave_')) for m in self.mods) or mn.endswith('_dpp')
        self.is_trans = mn.replace('_e32', '').replace('_e64', '') in TRANS
        self.is_dot = mn.startswith('v_dot')
        self.is_perml = mn.startswith('v_permlane')
        self.is_rdlane = mn.startswith(('v_readlane', 'v_readfirstlane'))
        self.is_wrlane = mn.startswith('v_writelane')
        self.lds_dma = self.is_vmem and ('lds' in self.mods or '_lds_' in mn)
        w, r = set(), set()
        R = [regs_of(o) for o in ops]
        self.srcC = set(); self.srcAB = set(); self.lanesel = set(); self.store_data = set()
        if self.is_mfma:
            w |= R[0]; self.srcAB = R[1] | R[2]; self.srcC = R[3]; r |= self.srcAB | self.srcC
            if '4x4x4' in mn: self.passes = 2
            elif '16x16x32' in mn or '16x16x16' in mn: self.passes = 4
            elif '32x32x16' in mn or '32x32x8' in mn: self.passes = 8
            else: raise ValueError(mn)
        elif self.is_valu:
            if mn.startswith('v_cmp'):
                w |= R[0]
                for x in R[1:]: r |= x
            elif self.is_perml and 'swap' in mn:
                w |= R[0] | R[1]; r |= R[0] | R[1]
            elif mn.startswith(('v_add_co', 'v_sub_co', 'v_addc_co', 'v_subb_co', 'v_subrev_co')):
                w |= R[0] | R[1]
                for x in R[2:]: r |= x
            else:
                w |= R[0]
                for x in R[1:]: r |= x
                if mn.startswith(('v_fmac', 'v_dot2c', 'v_pk_fmac')) or self.is_wrlane or self.is_dpp: r |= R[0]
                if mn.startswith('v_cndmask') and len(ops) == 3: r |= VCC
                if (self.is_rdlane or self.is_wrlane) and len(ops) == 3: self.lanesel = R[2]
        elif self.is_ds:
            if mn.startswith(('ds_read', 'ds_bpermute', 'ds_permute', 'ds_swizzle')) or '_rtn' in mn:
                w |= R[0]
                for x in R[1:]: r |= x
            else:
                for x in R: r |= x
        elif self.is_vmem:
            if self.lds_dma:
                for x in R: r |= x
                r |= {('s', 124)}
            elif '_load' in mn:
                w |= R[0]
                for x in R[1:]: r |= x
            else:
                for x in R: r |= x
                if mn.startswith('buffer_store'): d = R[0]
                elif mn.startswith('global_store'): d = R[1]
                else: d = set()
                if len(d) >= 3: self.store_data = d
                if 'atomic' in mn and 'sc0' in self.mods: w |= R[0]
        elif self.is_salu:
            if mn.startswith(('s_cmp', 's_cbranch', 's_branch', 's_waitcnt', 's_nop', 's_barrier', 's_endpgm',
                              's_setpc', 's_sleep', 's_setprio', 's_bitcmp')):
                for x in R: r |= x
            else:
                if R: w |= R[0]
                for x in R[1:]: r |= x
                if 'saveexec' in mn: w |= regs_of('exec')
        self.w, self.r = w, r
        self.states = 1
        if mn == 's_nop': self.states = int(ops[0], 0) + 1

def vg(s): return {x for x in s if x[0] in 'va'}
def sg(s): return {x for x in s if x[0] == 's'}

def need(p, c):
    n = 0
    if p.is_valu:
        pv, ps = vg(p.w), sg(p.w)
        if pv:
            if c.is_valu and c.is_dpp and pv & c.r: n = max(n, 2)
            if c.is_rdlane and pv & c.r: n = max(n, 1)
            if c.is_perml and pv & c.r: n = max(n, 2)
            if c.is_mfma and pv & c.r: n = max(n, 2)
            if p.is_trans and (c.is_valu or c.is_mfma) and pv & c.r: n = max(n, 1)
            if p.is_trans and (c.is_vmem or c.is_ds) and pv & c.r: n = max(n, 1)
            if p.is_dot and (pv & (c.r | c.w)):
                same_acc = c.is_dot and c.mn == p.mn and not (pv & (regs_of(c.ops[1]) | regs_of(c.ops[2])))
                if not same_acc: n = max(n, 3)
        if ps:
            if c.is_valu and ps & c.r: n = max(n, 2)
            if ps & c.lanesel: n = max(n, 4)
            if c.is_vmem and ps & c.r: n = max(n, 5)
            if c.is_salu and ps & c.r: n = max(n, 1)
    if p.is_mfma:
        big = {2: 5, 4: 8, 8: 12}[p.passes]
        if c.is_mfma:
            if p.w & c.srcAB: n = max(n, big)
            if p.w & c.srcC:
                if p.w == c.srcC and p.passes == c.passes: n = max(n, 2 if p.passes == 2 else 0)
                else: n = max(n, {2: 4, 4: 6, 8: 10}[p.passes])
            elif p.w & c.w: n = max(n, big)
        elif (c.is_valu or c.is_vmem or c.is_ds) and p.w & (c.r | c.w): n = max(n, big)
        if c.is_valu and p.srcC & c.w: n = max(n, {2: 1, 4: 3, 8: 7}[p.passes])
    if p.store_data and p.store_data & c.w: n = max(n, 2)
    if p.is_salu and ('s', 124) in p.w and c.lds_dma: n = max(n, 1)
    return n

def worst(p):
    if p.is_mfma: return {2: 5, 4: 8, 8: 12}[p.passes]
    if p.is_valu:
        if sg(p.w): return 5
        if p.is_dot: return 3
        return 2
    if p.store_data: return 2
    if p.is_salu and ('s', 124) in p.w: return 1
    return 0

class Asm:
    def __init__(self):
        self.lines = []
        self.hist = []
        self.nlab = 0
        self.count = 0
    def _push(self, ins):
        self.hist = [(p, d + ins.states) for p, d in self.hist if d + ins.states < 16]
        self.hist.append((ins, 0))
        self.lines.append('    ' + ins.text)
        self.count += 1
    def nop(self, n):
        while n > 0:
            k = min(n, 16)
            self._push(Insn('s_nop %d' % (k - 1))); n -= k
    def fence(self):
        n = 0
        for p, d in self.hist: n = max(n, worst(p) - d)
        self.nop(n)
    def __call__(self, text):
        for line in text.strip().split('\n'):
            line = line.split(';')[0].strip()
            if not line: continue
            ins = Insn(line)
            if ins.mn.startswith(('s_cbranch', 's_branch', 's_call', 's_setpc', 's_swappc')):
                n = 0
                for p, d in self.hist: n = max(n, worst(p) - d - 1)
                self.nop(n)
            n = 0
            for p, d in self.hist: n = max(n, need(p, ins) - d)
            self.nop(n)
            self._push(ins)
    def label(self, name):
        self.lines.append(name + ':')
    def newlabel(self, stem='L'):
        self.nlab += 1
        return '%s_%d' % (stem, self.nlab)
    def comment(self, s):
        self.lines.append('    ; ' + s)
    def raw(self, s):
        self.lines.append(s)
    def text(self):
        return '\n'.join(self.lines) + '\n'
```

```python
import sys, struct
from asmlib import Asm

NAME = "interleave_layers__gqa_block_cached__mixer_token_mlp__decode"
HEADER = open('cdna_kernels/%s.s.ref' % NAME).read().split('; Override launch')[0]

def f32(x): return '0x%08x' % struct.unpack('<I', struct.pack('<f', x))[0]

class Cfg:
    W = 6
    stamps = 0
    R = 8
    force_global = 0
    tmo = 400000
    gq, go0, go1, gr0, gr1, gp = 0, 1, 2, 1, 2, 0

OB_OFF, OB_SET = 0x0, 0xA0000
YL_OFF, YL_SET = 0x140000, 0x80000
QB_OFF = 0x240000
XP_OFF = 0x280000
ROW_OFF = 0x2C0000
XDBG_OFF = 0x300000
DBG_OFF = 0x400000
WS_BYTES = 0x800000
L_RING, L_HOME, L_COMB, L_WQ, L_MISC = 0, 65536, 131072, 147456, 161792
L_CNT = L_MISC
C_COMB, C_MIX, C_CLR, F_Q, F_O, F_H, F_GO, C_WQ, F_X, C_ROW, F_Y = 0, 8, 16, 24, 32, 40, 48, 52, 56, 64, 72
L_ML = L_MISC + 256
L_MIX = L_MISC + 384
L_MBO = L_MISC + 448
L_MBH = L_MISC + 512
LDS_BYTES = L_MISC + 576

S_X, S_K, S_V, S_WQ, S_WO, S_W1, S_B1, S_W2, S_B2, S_OUT, S_DBG, S_WS = \
    's[16:17]', 's[18:19]', 's[20:21]', 's[22:23]', 's[24:25]', 's[28:29]', 's[30:31]', 's[32:33]', 's[34:35]', 's[36:37]', 's[38:39]', 's[40:41]'
SRD_S, SRD_W = 's[4:7]', 's[12:15]'
sW, sH, sSP, sWG = 's42', 's43', 's44', 's45'
sISS, sLAND, sMOV, sLIM, sSEQ, sOPS, sDONE = 's46', 's47', 's48', 's49', 's50', 's51', 's52'
sHIST, sHLO = 's[8:9]', 's8'
sLOC, sSLOT = 's10', 's11'
sXCC = 's27'
sGB, sRING, sM0N, sGOFF, sXR, sDX = 's53', 's54', 's55', 's56', 's57', 's58'
sT = ['s59', 's60', 's61', 's62', 's63']
RET_S, RET_A = 's[64:65]', 's[66:67]'
sP, sTMO, sB2V, sC = 's68', 's69', 's70', 's71'
sCOMB, sPASS, sB, sTAG = 's72', 's73', 's74', 's75'
sU = ['s%d' % i for i in range(76, 92)]
sSTAMP = 's[92:93]'
sSTO = 's94'
sREP = 's95'
sCOL = 's26'
vL, vBK, vBV, vCUR, vKA, vVA = 'v0', 'v1', 'v2', 'v3', 'v4', 'v5'
vS = ['v6', 'v7', 'v8', 'v9']
WO0 = 48

def home(idx):
    return ('a', idx * 32) if idx < 8 else ('v', 64 + (idx - 8) * 32)
def hreg(idx, off, n):
    f, b = home(idx)
    return '%s[%d:%d]' % (f, b + off, b + off + n - 1)

def gen(cfg):
    a = Asm()
    a.raw(HEADER.rstrip())
    a.raw('; @launch grid=(256,1,1) block=(256,1,1) lds=%d' % LDS_BYTES)
    a.raw('.amdgcn_target "amdgcn-amd-amdhsa--gfx950"')
    a.raw('.text')
    a.raw('.globl %s_kernel' % NAME)
    a.raw('.p2align 8')
    a.raw('.type %s_kernel,@function' % NAME)
    a.label('%s_kernel' % NAME)

    def service(): a('s_call_b64 %s, L_service' % RET_S)

    def stamp(ev):
        if not cfg.stamps: return
        a('s_memrealtime %s' % sSTAMP)
        a('s_mul_i32 %s, %s, 96' % (sU[15], sP))
        a('s_add_u32 %s, %s, %s' % (sU[15], sU[15], sSTO))
        a('s_waitcnt lgkmcnt(0)')
        a('v_mov_b32 %s, s92' % vS[0])
        a('v_mov_b32 %s, 0' % vS[1])
        a('s_mov_b64 exec, 1')
        a('buffer_store_dword %s, %s, %s, %s offen offset:%d' % (vS[0], vS[1], SRD_W, sU[15], 4 * ev))
        a('s_mov_b64 exec, -1')

    def tmo_check():
        a('s_sub_u32 %s, %s, 1' % (sTMO, sTMO))
        a('s_cbranch_scc1 L_exit')

    def issued(n):
        if n:
            a('s_lshl_b64 %s, %s, %d' % (sHIST, sHIST, n))
            a('s_add_u32 %s, %s, %d' % (sOPS, sOPS, n))
        a('s_mov_b32 %s, %s' % (sSEQ, sOPS))

    def wait_seq():
        Lw = a.newlabel('L_w')
        a.label(Lw)
        service()
        tmo_check()
        a('s_cmp_ge_i32 %s, %s' % (sDONE, sSEQ))
        a('s_cbranch_scc0 %s' % Lw)

    def wait_loads(n):
        issued(n)
        wait_seq()

    def poll(issue, n, regs, tag, tmp):
        Lr = a.newlabel('L_pr')
        a.label(Lr)
        issue()
        wait_loads(n)
        a('v_xor_b32 %s, %s, %s' % (tmp, tag, regs[0]))
        for r in regs[1:]:
            a('v_bitop3_b32 %s, %s, %s, %s bitop3:0xf6' % (tmp, tmp, r, tag))
        a('v_and_b32 %s, 15, %s' % (tmp, tmp))
        a('v_cmp_ne_u32 vcc, 0, %s' % tmp)
        a('s_cbranch_vccnz %s' % Lr)

    def lstore(*texts):
        Lg, Le = a.newlabel('L_g'), a.newlabel('L_e')
        a('s_cmp_eq_u32 %s, 0' % sLOC)
        a('s_cbranch_scc1 %s' % Lg)
        for t in texts: a(t)
        a('s_branch %s' % Le)
        a.label(Lg)
        for t in texts: a(t + ' sc1')
        a.label(Le)

    def lds_wait(flag_off, want, t, reads=None):
        Lw = a.newlabel('L_lw')
        a('v_mov_b32 %s, %d' % (t[0], L_CNT + flag_off))
        a.label(Lw)
        service()
        tmo_check()
        a('ds_read_b32 %s, %s' % (t[1], t[0]))
        if reads: reads()
        a('s_waitcnt lgkmcnt(0)')
        a('v_readfirstlane_b32 %s, %s' % (sU[14], t[1]))
        a('s_cmp_ge_u32 %s, %s' % (sU[14], want))
        a('s_cbranch_scc0 %s' % Lw)

    def lds_flag(flag_off, val, t):
        a('v_mov_b32 %s, %d' % (t[0], L_CNT + flag_off))
        a('v_mov_b32 %s, %s' % (t[1], val))
        a('s_mov_b64 exec, 1')
        a('ds_write_b32 %s, %s' % (t[0], t[1]))
        a('s_mov_b64 exec, -1')

    DPP = 'row_mask:0xf bank_mask:0xf'
    def wave_sum(regs):
        for m in ('quad_perm:[1,0,3,2] ' + DPP, 'quad_perm:[2,3,0,1] ' + DPP, 'row_half_mirror ' + DPP,
                  'row_mirror ' + DPP, 'row_bcast:15 row_mask:0xa bank_mask:0xf', 'row_bcast:31 row_mask:0xc bank_mask:0xf'):
            for r in regs:
                a('v_add_f32_dpp %s, %s, %s %s' % (r, r, r, m))

    def xrow(op, r, t):
        for sw in ('v_permlane16_swap_b32', 'v_permlane32_swap_b32'):
            a('v_mov_b32 %s, %s' % (t, r))
            a('%s %s, %s' % (sw, r, t))
            a('%s %s, %s, %s' % (op, r, r, t))

    def bf16r(regs, tmp):
        for i in range(0, len(regs) - 1, 2):
            x, y = regs[i], regs[i + 1]
            a('v_cvt_pk_bf16_f32 %s, %s, %s' % (tmp, x, y))
            a('v_lshlrev_b32 %s, 16, %s' % (x, tmp))
            a('v_and_b32 %s, 0xffff0000, %s' % (y, tmp))
        if len(regs) & 1:
            x = regs[-1]
            a('v_cvt_pk_bf16_f32 %s, %s, %s' % (tmp, x, x))
            a('v_lshlrev_b32 %s, 16, %s' % (x, tmp))

    def ln_stats(X, t, padded=False):
        s, d, mb, r = t[0], t[1], t[2], t[3]
        if padded:
            a('s_mov_b32 vcc_lo, 0x55555555')
            a('s_mov_b32 vcc_hi, 0x55555555')
        else:
            a('v_cmp_gt_u32 vcc, 56, v0')
        a('v_add_f32 %s, %s, %s' % (s, X[0], X[1]))
        a('v_add_f32 %s, %s, %s' % (d, X[2], X[3]))
        a('v_add_f32 %s, %s, %s' % (mb, X[4], X[5]))
        a('v_add_f32 %s, %s, %s' % (r, X[6], X[7]))
        a('v_add_f32 %s, %s, %s' % (s, s, d))
        if padded: a('v_cndmask_b32 %s, 0, %s, vcc' % (r, r))
        a('v_add_f32 %s, %s, %s' % (mb, mb, r))
        a('v_add_f32 %s, %s, %s' % (s, s, mb))
        if not padded: a('v_cndmask_b32 %s, 0, %s, vcc' % (s, s))
        wave_sum([s])
        a('v_readlane_b32 %s, %s, 63' % (sU[14], s))
        a('v_mov_b32 %s, %s' % (mb, f32(1.0 / 448)))
        a('v_mul_f32 %s, %s, %s' % (mb, sU[14], mb))
        for i in range(0, 8, 2):
            a('v_sub_f32 %s, %s, %s' % (d, X[i], mb))
            a('v_sub_f32 %s, %s, %s' % (r, X[i + 1], mb))
            if padded and i == 6:
                a('v_cndmask_b32 %s, 0, %s, vcc' % (d, d))
                a('v_cndmask_b32 %s, 0, %s, vcc' % (r, r))
            if i == 0: a('v_mul_f32 %s, %s, %s' % (s, d, d))
            else: a('v_fmac_f32 %s, %s, %s' % (s, d, d))
            a('v_fmac_f32 %s, %s, %s' % (s, r, r))
        if not padded: a('v_cndmask_b32 %s, 0, %s, vcc' % (s, s))
        wave_sum([s])
        a('v_readlane_b32 %s, %s, 63' % (sU[14], s))
        a('v_mov_b32 %s, %s' % (r, f32(1.0 / 448)))
        a('v_mul_f32 %s, %s, %s' % (r, sU[14], r))
        bf16r([mb, r], d)
        a('v_add_f32 %s, %s, %s' % (r, f32(1e-5), r))
        bf16r([r], d)
        a('v_sqrt_f32 %s, %s' % (r, r))
        bf16r([r], d)
        a('v_rcp_f32 %s, %s' % (r, r))
        return mb, r

    def ln_apply(X, mb, r, tmp, final_round=True):
        for x in X: a('v_sub_f32 %s, %s, %s' % (x, x, mb))
        bf16r(X, tmp)
        for x in X: a('v_mul_f32 %s, %s, %s' % (x, x, r))
        if final_round: bf16r(X, tmp)

    def last_arriver(Lskip, t):
        a('v_mov_b32 %s, 1' % t[1])
        a('s_mov_b64 exec, 1')
        a('ds_add_rtn_u32 %s, %s, %s' % (t[1], t[0], t[1]))
        a('s_mov_b64 exec, -1')
        a('s_waitcnt lgkmcnt(0)')
        a('v_readfirstlane_b32 %s, %s' % (sU[14], t[1]))
        a('s_and_b32 %s, %s, 3' % (sU[14], sU[14]))
        a('s_cmp_eq_u32 %s, 3' % sU[14])
        a('s_cbranch_scc0 %s' % Lskip)

    def only_wave(w, Lskip):
        a('s_cmp_lg_u32 %s, %d' % (sW, w))
        a('s_cbranch_scc1 %s' % Lskip)

    a('s_cmp_ge_u32 s2, 256')
    a('s_cbranch_scc1 L_exit')
    a('s_load_dwordx16 s[16:31], s[0:1], 0')
    a('s_load_dwordx8 s[32:39], s[0:1], 64')
    a('s_load_dwordx2 s[40:41], s[0:1], 96')
    a('v_lshrrev_b32 v1, 6, v0')
    a('v_and_b32 v0, 63, v0')
    a('v_readfirstlane_b32 %s, v1' % sW)
    a('s_mov_b32 %s, s2' % sWG)
    a('s_and_b32 %s, s2, 7' % sH)
    a('s_lshr_b32 %s, s2, 3' % sSP)
    a('v_lshrrev_b32 v6, 5, v0')
    a('v_and_b32 v7, 31, v0')
    a('v_xor_b32 v8, v7, v6')
    a('v_lshlrev_b32 v8, 4, v8')
    a('v_lshl_add_u32 %s, v6, 9, v8' % vBK)
    a('v_lshlrev_b32 v8, 2, v6')
    a('v_xor_b32 v8, v7, v8')
    a('v_lshlrev_b32 v8, 4, v8')
    a('v_lshl_add_u32 %s, v6, 9, v8' % vBV)
    a('v_mov_b32 %s, %s' % (vCUR, vBK))
    a('s_lshl_b32 %s, %s, 22' % (sGB, sH))
    a('s_lshl_b32 %s, %s, 17' % (sT[0], sSP))
    a('s_add_u32 %s, %s, %s' % (sGB, sGB, sT[0]))
    a('s_lshl_b32 %s, %s, 10' % (sT[0], sW))
    a('s_add_u32 %s, %s, %s' % (sGB, sGB, sT[0]))
    a('s_lshl_b32 %s, %s, 14' % (sRING, sW))
    a('s_mov_b32 %s, %s' % (sM0N, sRING))
    a('s_mov_b32 %s, %s' % (sGOFF, sGB))
    for r, val in ((sISS, 0), (sLAND, 0), (sMOV, 0), (sLIM, 16), (sSEQ, 0), (sOPS, 0), (sDONE, 0), ('s8', 0), ('s9', 0), (sLOC, 0), (sXR, 0), (sDX, 32),
                   (sP, 0), (sTMO, cfg.tmo)):
        a('s_mov_b32 %s, %d' % (r, val))
    a('s_mov_b32 %s, %s' % (sC, f32(1.4426950408889634 / 16)))
    a('s_mov_b32 s6, 0x10000000')
    a('s_mov_b32 s7, 0x00020000')
    a('s_mov_b32 s14, 0x%x' % WS_BYTES)
    a('s_mov_b32 s15, 0x00020000')
    a('s_getreg_b32 %s, hwreg(HW_REG_XCC_ID)' % sREP)
    a('s_and_b32 %s, %s, 7' % (sREP, sREP))
    a('v_and_b32 v6, 15, v0')
    a('v_lshrrev_b32 v7, 4, v0')
    a('v_xor_b32 v8, v6, v7')
    a('v_lshlrev_b32 v8, 4, v8')
    a('v_lshl_add_u32 %s, v6, 9, v8' % vKA)
    a('v_lshrrev_b32 v8, 2, v6')
    a('v_bfe_u32 v9, v0, 1, 1')
    a('v_lshl_add_u32 v9, v7, 1, v9')
    a('v_lshlrev_b32 v7, 2, v8')
    a('v_xor_b32 v9, v9, v7')
    a('v_lshlrev_b32 v9, 4, v9')
    a('v_lshl_add_u32 v9, v8, 9, v9')
    a('v_and_b32 v7, 1, v0')
    a('v_lshl_add_u32 %s, v7, 3, v9' % vVA)
    a('s_waitcnt lgkmcnt(0)')
    a('s_mov_b64 s[4:5], %s' % S_K)
    a('s_mov_b64 s[12:13], %s' % S_WS)
    a('s_mov_b32 %s, %s' % (sXCC, sREP))
    if cfg.R == 8: a('s_lshl_b32 %s, %s, 11' % (sREP, sREP))
    else: a('s_mov_b32 %s, 0' % sREP)
    a('s_sub_u32 %s, %s, 224' % (sCOL, sWG))
    a('s_cselect_b32 %s, %s, %s' % (sCOL, sWG, sCOL))
    a('s_mul_i32 %s, %s, 9363' % (sU[0], sCOL))
    a('s_lshr_b32 %s, %s, 16' % (sU[0], sU[0]))
    a('s_mul_i32 %s, %s, 7' % (sU[1], sU[0]))
    a('s_sub_u32 %s, %s, %s' % (sU[1], sCOL, sU[1]))
    a('s_lshl_b32 %s, %s, 6' % (sU[0], sU[0]))
    a('s_lshl3_add_u32 %s, %s, %s' % (sSLOT, sU[1], sU[0]))
    if cfg.stamps:
        a('s_lshl_b32 %s, %s, 2' % (sSTO, sWG))
        a('s_add_u32 %s, %s, %s' % (sSTO, sSTO, sW))
        a('s_lshl_b32 %s, %s, 10' % (sSTO, sSTO))
        a('s_add_u32 %s, %s, 0x%x' % (sSTO, sSTO, DBG_OFF))
    a('v_mov_b32 v12, 0\nv_mov_b32 v13, 0\nv_mov_b32 v14, 0\nv_mov_b32 v15, 0')
    a('v_lshlrev_b32 v11, 4, v0')
    a('s_mul_i32 %s, %s, 12288' % (sU[0], sWG))
    a('s_mul_i32 %s, %s, 3072' % (sU[1], sW))
    a('s_add_u32 %s, %s, %s' % (sU[0], sU[0], sU[1]))
    service()
    for i in range(3):
        a('buffer_store_dwordx4 v[12:15], v11, %s, %s offen offset:%d sc1' % (SRD_W, sU[0], 1024 * i))
    stamp(0)
    a('v_lshlrev_b32 v11, 2, v0')
    a('v_add_u32 v11, %d, v11' % L_CNT)
    a('ds_write_b32 v11, v12')
    a('s_waitcnt lgkmcnt(0)')
    a('s_barrier')
    wait_loads(0)
    Lsk = a.newlabel('L_sk')
    a('v_mov_b32 v14, 0\nv_mov_b32 v15, 0')
    a('v_mov_b32 v10, %d' % (L_CNT + C_CLR))
    last_arriver(Lsk, ['v10', 'v11'])
    a('s_mul_i32 %s, %s, 6' % (sU[0], sXCC))
    a('s_lshl_b64 s[78:79], 1, %s' % sU[0])
    a('s_or_b32 s79, s79, 0x10000')
    a('v_mov_b32 v12, s78\nv_mov_b32 v13, s79')
    a('s_lshl_b32 %s, %s, 3' % (sU[0], sH))
    a('v_mov_b32 v10, %s' % sU[0])
    a('s_mov_b64 exec, 1')
    a('global_atomic_add_x2 v[14:15], v10, v[12:13], %s sc0 sc1' % S_DBG)
    a('s_mov_b64 exec, -1')
    a.label(Lsk)
    a('s_lshl_b32 %s, %s, 9' % (sU[0], sH))
    a('s_lshl_b32 %s, %s, 4' % (sU[1], sSP))
    a('s_add_u32 %s, %s, %s' % (sU[2], sU[0], sU[1]))
    a('s_mul_i32 %s, %s, 896' % (sU[0], sU[2]))
    a('s_mul_i32 %s, %s, 224' % (sU[1], sW))
    a('s_add_u32 %s, %s, %s' % (sU[0], sU[0], sU[1]))
    a('v_and_b32 v10, 7, v0')
    a('v_min_u32 v10, 6, v10')
    a('v_lshlrev_b32 v10, 2, v10')
    a('v_lshrrev_b32 v11, 3, v0')
    a('v_mad_u32_u24 v10, v11, 28, v10')
    a('v_add_u32 v10, %s, v10' % sU[0])
    for r in range(16):
        if r and r % 4 == 0: a('v_add_u32 v10, %d, v10' % (4 * 896))
        a('global_load_dword v%d, v10, %s offset:%d nt' % (16 + r, S_WO, (r % 4) * 896))
    a('s_mul_i32 %s, %s, %d' % (sU[0], sW, 112 * 8192))
    a('s_lshl_b32 %s, %s, 1' % (sU[1], sU[2]))
    a('s_add_u32 %s, %s, %s' % (sU[0], sU[0], sU[1]))
    a('v_lshrrev_b32 v10, 1, v0')
    a('v_lshlrev_b32 v10, 13, v10')
    a('v_and_b32 v11, 1, v0')
    a('v_lshl_add_u32 v10, v11, 4, v10')
    a('v_add_u32 v10, %s, v10' % sU[0])
    for i in range(4):
        if i == 3: a('s_mov_b32 exec_hi, 0')
        a('global_load_dwordx4 v[%d:%d], v10, %s' % (32 + 4 * i, 35 + 4 * i, S_WQ))
        if i < 3: a('v_add_u32 v10, %d, v10' % (32 * 8192))
    a('s_mov_b64 exec, -1')
    a('v_mov_b32 v10, 0')
    a('global_load_ushort v11, v10, %s' % S_B2)
    wait_loads(16 + 4 + 1)
    a('v_lshlrev_b32 v11, 16, v11')
    a('v_readfirstlane_b32 %s, v11' % sB2V)
    Lsk = a.newlabel('L_sk')
    a('v_readfirstlane_b32 s78, v14')
    a('v_readfirstlane_b32 s79, v15')
    a('s_lshr_b32 %s, s79, 16' % sU[0])
    a('s_cmp_eq_u32 %s, 31' % sU[0])
    a('s_cbranch_scc0 %s' % Lsk)
    a('s_mul_i32 %s, %s, 6' % (sU[0], sXCC))
    a('s_lshr_b64 s[78:79], s[78:79], %s' % sU[0])
    a('s_and_b32 %s, s78, 63' % sU[0])
    a('s_cmp_eq_u32 %s, 31' % sU[0])
    a('s_cselect_b32 %s, 1, 0' % sU[0])
    a('s_lshl_b32 %s, %s, %s' % (sU[0], sU[0], sH))
    a('s_or_b32 %s, %s, 0x10000' % (sU[0], sU[0]))
    a('v_mov_b32 v11, %s' % sU[0])
    a('s_mov_b64 exec, 1')
    a('global_atomic_add v12, v10, v11, %s offset:64 sc0 sc1' % S_DBG)
    a('s_mov_b64 exec, -1')
    wait_loads(0)
    a('v_readfirstlane_b32 %s, v12' % sU[1])
    a('s_add_u32 %s, %s, %s' % (sU[1], sU[1], sU[0]))
    a('s_lshr_b32 %s, %s, 16' % (sU[0], sU[1]))
    a('s_cmp_eq_u32 %s, 8' % sU[0])
    a('s_cbranch_scc0 %s' % Lsk)
    a('v_mov_b32 v11, %s' % sU[1])
    a('s_mov_b64 exec, 1')
    a('global_store_dword v10, v11, %s offset:128 sc1' % S_DBG)
    a('s_mov_b64 exec, -1')
    a.label(Lsk)
    a('s_mov_b32 %s, 0x05040100' % sU[0])
    a('s_mov_b32 %s, 0x07060302' % sU[1])
    for aa in range(4):
        for cgi in range(2):
            for hh in range(2):
                r0 = 16 + 4 * aa + 2 * hh
                a('v_perm_b32 v%d, v%d, v%d, %s' % (WO0 + aa * 4 + cgi * 2 + hh, r0 + 1, r0, sU[cgi]))
    a('s_mul_i32 %s, %s, 3584' % (sU[0], sW))
    a('s_add_u32 %s, %s, %d' % (sU[0], sU[0], L_WQ))
    a('v_lshl_add_u32 v10, v0, 4, %s' % sU[0])
    for i in range(4):
        if i == 3: a('s_mov_b32 exec_hi, 0')
        a('ds_write_b128 v10, v[%d:%d] offset:%d' % (32 + 4 * i, 35 + 4 * i, 1024 * i))
    a('v_mov_b32 v10, %d' % (L_CNT + C_WQ))
    a('v_mov_b32 v11, 1')
    a('s_mov_b64 exec, 1')
    a('ds_add_u32 v10, v11')
    a('s_mov_b64 exec, -1')
    stamp(1)

    X8 = ['v%d' % i for i in range(10, 18)]

    def qproj_pre():
        a('v_lshrrev_b32 v22, 4, v0')
        a('v_bfe_u32 v23, v0, 2, 2')
        a('v_lshl_add_u32 v22, v22, 3, v23')
        a('v_lshlrev_b32 v22, 5, v22')
        a('v_and_b32 v23, 3, v0')
        a('v_lshl_add_u32 v22, v23, 3, v22')
        a('v_add_u32 v22, %d, v22' % L_WQ)
        for s in range(6): wq_frag(s, 24 + 4 * s)
    def wq_frag(s, reg):
        a('ds_read_b64_tr_b16 v[%d:%d], v22 offset:%d' % (reg, reg + 1, 1024 * s))
        a('ds_read_b64_tr_b16 v[%d:%d], v22 offset:%d' % (reg + 2, reg + 3, 1024 * s + 128))

    def qproj_core(b_sgpr, layer, before_publish=None):
        mb, r = ln_stats(X8, ['v18', 'v19', 'v20', 'v21'])
        ln_apply(X8, mb, r, 'v18', final_round=False)
        for i in range(4): a('v_cvt_pk_bf16_f32 v%d, %s, %s' % (18 + i, X8[2 * i], X8[2 * i + 1]))
        a('s_lshl_b32 %s, %s, 11' % (sU[0], sW))
        a('s_add_u32 %s, %s, %d' % (sU[0], sU[0], L_COMB))
        a('v_lshl_add_u32 v23, v0, 4, %s' % sU[0])
        a('ds_write_b128 v23, v[18:21]')
        a('v_lshrrev_b32 v23, 4, v0')
        a('v_lshl_add_u32 v23, v23, 4, %s' % sU[0])
        a('ds_read_b128 v[10:13], v23')
        a('ds_read_b128 v[14:17], v23 offset:64')
        for s in range(14):
            a('s_waitcnt lgkmcnt(%d)' % (0 if s == 13 else (1 if (s == 0 or s > 8) else 3)))
            A = 10 + 4 * (s & 1)
            B = 24 + 4 * (s % 6)
            a('v_mfma_f32_16x16x32_bf16 v[18:21], v[%d:%d], v[%d:%d], %s' % (A, A + 3, B, B + 3, '0' if s == 0 else 'v[18:21]'))
            if s + 6 < 14: wq_frag(s + 6, B)
            if s + 2 < 14: a('ds_read_b128 v[%d:%d], v23 offset:%d' % (A, A + 3, 64 * (s + 2)))
        a('s_lshl_b32 %s, %s, 14' % (sU[0], b_sgpr))
        a('s_lshl_b32 %s, %s, 11' % (sU[1], sH))
        a('s_add_u32 %s, %s, %s' % (sU[0], sU[0], sU[1]))
        a('s_lshl_b32 %s, %s, 6' % (sU[1], sSP))
        a('s_add_u32 %s, %s, %s' % (sU[0], sU[0], sU[1]))
        a('s_add_u32 %s, %s, 0x%x' % (sU[0], sU[0], QB_OFF + layer * 0x20000))
        a('v_lshlrev_b32 v10, 2, v0')
        a('v_cvt_pk_bf16_f32 v11, v18, v18')
        a('v_lshl_or_b32 v11, v11, 16, 1')
        if before_publish: before_publish()
        a('s_mov_b64 exec, 0xffff')
        lstore('buffer_store_dword v11, v10, %s, %s offen' % (SRD_W, sU[0]))
        a('s_mov_b64 exec, -1')

    def q0_task(b_sgpr, before_publish=None):
        a('s_mul_i32 %s, %s, 896' % (sU[0], b_sgpr))
        a('v_min_u32 v18, 55, v0')
        a('v_lshl_add_u32 v18, v18, 4, %s' % sU[0])
        a('global_load_dwordx4 v[18:21], v18, %s' % S_X)
        issued(1)
        qproj_pre()
        wait_seq()
        for i in range(4):
            a('v_lshlrev_b32 %s, 16, v%d' % (X8[2 * i], 18 + i))
            a('v_and_b32 %s, 0xffff0000, v%d' % (X8[2 * i + 1], 18 + i))
        qproj_core(b_sgpr, 0, before_publish)

    def wait_go():
        Lr = a.newlabel('L_go')
        a('v_mov_b32 v12, 0')
        a.label(Lr)
        a('global_load_dword v13, v12, %s offset:128 sc1' % S_DBG)
        wait_loads(1)
        a('v_cmp_eq_u32 vcc, 0, v13')
        a('s_cbranch_vccnz %s' % Lr)
        a('v_readfirstlane_b32 %s, v13' % sU[14])
        lds_flag(F_GO, sU[14], ['v12', 'v13'])
        set_loc()
    def set_loc():
        a('s_lshr_b32 %s, %s, %s' % (sLOC, sU[14], sH))
        a('s_and_b32 %s, %s, %d' % (sLOC, sLOC, 0 if cfg.force_global else 1))
    Lo, Le = a.newlabel('L_o'), a.newlabel('L_e')
    only_wave(cfg.gp, Lo)
    a('s_mov_b32 %s, 0' % sB)
    lds_wait(C_WQ, '4', ['v10', 'v11'])
    q0_task(sB, wait_go)
    a('s_branch %s' % Le)
    a.label(Lo)
    lds_wait(F_GO, '1', ['v10', 'v11'])
    set_loc()
    a.label(Le)
    stamp(2)

    def set_b(layer):
        if layer == 0: a('s_mov_b32 %s, %s' % (sB, sP))
        else: a('s_sub_u32 %s, %s, 1' % (sB, sP))
        a('s_add_u32 %s, %s, 1' % (sTAG, sB))

    def guard(layer, Lskip):
        if layer == 0: a('s_cmp_ge_u32 %s, 8' % sP)
        else: a('s_cmp_eq_u32 %s, 0' % sP)
        a('s_cbranch_scc1 %s' % Lskip)

    def row_off(dst, rep=True):
        a('s_lshl_b32 %s, %s, 14' % (dst, sB))
        a('s_add_u32 %s, %s, 0x%x' % (dst, dst, ROW_OFF))
        if rep: a('s_add_u32 %s, %s, %s' % (dst, dst, sREP))

    def xp_off(layer, dst):
        a('s_lshl_b32 %s, %s, 14' % (dst, sB))
        a('s_add_u32 %s, %s, 0x%x' % (dst, dst, XP_OFF + layer * 0x20000))

    def task_attn(layer):
        Lsk, Lo, Le = a.newlabel('L_sk'), a.newlabel('L_o'), a.newlabel('L_e')
        guard(layer, Lsk)
        set_b(layer)
        a('s_mov_b32 %s, %d' % (sPASS, layer))
        a('s_lshl_b32 %s, %s, 11' % (sCOMB, sW))
        a('s_add_u32 %s, %s, %d' % (sCOMB, sCOMB, L_COMB + layer * 8192))
        only_wave(cfg.gq, Lo)
        a('s_lshl_b32 %s, %s, 14' % (sU[0], sB))
        a('s_lshl_b32 %s, %s, 11' % (sU[1], sH))
        a('s_add_u32 %s, %s, %s' % (sU[0], sU[0], sU[1]))
        a('s_add_u32 %s, %s, 0x%x' % (sU[0], sU[0], QB_OFF + layer * 0x20000))
        a('v_lshlrev_b32 v10, 5, v0')
        def issue():
            a('buffer_load_dwordx4 v[12:15], v10, %s, %s offen sc1' % (SRD_W, sU[0]))
            a('buffer_load_dwordx4 v[16:19], v10, %s, %s offen offset:16 sc1' % (SRD_W, sU[0]))
        poll(issue, 2, ['v%d' % i for i in range(12, 20)], '1', 'v11')
        a('s_mov_b32 %s, 0x07060302' % sU[1])
        for i in range(4):
            a('v_perm_b32 v%d, v%d, v%d, %s' % (20 + i, 13 + 2 * i, 12 + 2 * i, sU[1]))
        a('v_lshlrev_b32 v10, 4, v0')
        a('v_add_u32 v10, %d, v10' % (L_COMB + layer * 8192))
        for w in range(4): a('ds_write_b128 v10, v[20:23] offset:%d' % (2048 * w))
        lds_flag(F_Q + 4 * layer, sTAG, ['v10', 'v11'])
        a('s_branch %s' % Le)
        a.label(Lo)
        lds_wait(F_Q + 4 * layer, sTAG, ['v10', 'v11'])
        a.label(Le)
        if layer == 0:
            Lw = a.newlabel('L_tw')
            a('s_lshl_b32 %s, %s, 3' % (sU[0], sTAG))
            a.label(Lw)
            service()
            tmo_check()
            a('s_cmp_ge_u32 %s, %s' % (sMOV, sU[0]))
            a('s_cbranch_scc0 %s' % Lw)
        stamp(3 + layer)
        L1, L2 = a.newlabel('L_a'), a.newlabel('L_a')
        a('s_bitcmp1_b32 %s, 0' % sB)
        a('s_cbranch_scc1 %s' % L1)
        a('s_call_b64 %s, L_attn0' % RET_A)
        a('s_branch %s' % L2)
        a.label(L1)
        a('s_call_b64 %s, L_attn1' % RET_A)
        a.label(L2)
        stamp(5 + layer)
        a.label(Lsk)

    def task_oproj(layer):
        Lsk, Lo, Le = a.newlabel('L_sk'), a.newlabel('L_o'), a.newlabel('L_e')
        guard(layer, Lsk)
        set_b(layer)
        a('v_bfe_u32 v30, v0, 2, 2')
        a('v_lshlrev_b32 v30, 3, v30')
        a('v_add_u32 v30, %d, v30' % (L_MBO + 32 * layer))
        only_wave(cfg.go0 if layer == 0 else cfg.go1, Lo)
        a('v_lshrrev_b32 v11, 2, v0')
        a('v_mul_u32_u24 v11, %d, v11' % (8 * 2560))
        a('v_and_b32 v10, 3, v0')
        a('v_lshl_add_u32 v10, v10, 4, v11')
        a('s_mul_i32 %s, %s, 2560' % (sU[0], sH))
        a('s_mul_i32 %s, %s, 80' % (sU[1], sSP))
        a('s_add_u32 %s, %s, %s' % (sU[0], sU[0], sU[1]))
        a('s_add_u32 %s, %s, 0x%x' % (sU[0], sU[0], OB_OFF + layer * OB_SET))
        a('s_add_u32 %s, %s, %d' % (sU[1], sU[0], 16 * 8 * 2560))
        def issue():
            a('buffer_load_dwordx4 v[12:15], v10, %s, %s offen sc1' % (SRD_W, sU[0]))
            a('buffer_load_dwordx4 v[16:19], v10, %s, %s offen sc1' % (SRD_W, sU[1]))
            a('buffer_load_dword v20, v11, %s, %s offen offset:64 sc1' % (SRD_W, sU[0]))
            a('buffer_load_dword v21, v11, %s, %s offen offset:64 sc1' % (SRD_W, sU[1]))
        poll(issue, 4, ['v%d' % i for i in range(12, 22)], sTAG, 'v22')
        stamp(7 + layer)
        ROR = ('row_ror:4 ' + DPP, 'row_ror:8 ' + DPP)
        a('v_max_f32 v22, v20, v21')
        for m in ROR: a('v_max_f32_dpp v22, v22, v22 ' + m)
        xrow('v_max_f32', 'v22', 'v23')
        a('v_sub_f32 v20, v20, v22')
        a('v_sub_f32 v21, v21, v22')
        a('v_exp_f32 v20, v20')
        a('v_exp_f32 v21, v21')
        for c in range(4): a('v_mul_f32 v%d, v%d, v20' % (12 + c, 12 + c))
        for c in range(4): a('v_fmac_f32 v%d, v%d, v21' % (12 + c, 16 + c))
        a('v_add_f32 v16, v20, v21')
        R5 = ['v12', 'v13', 'v14', 'v15', 'v16']
        for m in ROR:
            for r in R5: a('v_add_f32_dpp %s, %s, %s %s' % (r, r, r, m))
        for sw in ('v_permlane16_swap_b32', 'v_permlane32_swap_b32'):
            for i, r in enumerate(R5): a('v_mov_b32 v%d, %s' % (17 + i, r))
            for i, r in enumerate(R5): a('%s %s, v%d' % (sw, r, 17 + i))
            for i, r in enumerate(R5): a('v_add_f32 %s, %s, v%d' % (r, r, 17 + i))
        a('v_rcp_f32 v16, v16')
        for c in range(4): a('v_mul_f32 v%d, v%d, v16' % (12 + c, 12 + c))
        a('v_cvt_pk_bf16_f32 v18, v12, v13')
        a('v_cvt_pk_bf16_f32 v19, v14, v15')
        a('v_lshlrev_b32 v10, 3, v0')
        a('v_add_u32 v10, %d, v10' % (L_MBO + 32 * layer))
        a('s_mov_b64 exec, 15')
        a('ds_write_b64 v10, v[18:19]')
        a('s_mov_b64 exec, -1')
        lds_flag(F_O + 4 * layer, sTAG, ['v10', 'v11'])
        a('ds_read_b64 v[18:19], v30')
        a('s_waitcnt lgkmcnt(0)')
        a('s_branch %s' % Le)
        a.label(Lo)
        lds_wait(F_O + 4 * layer, sTAG, ['v10', 'v11'], reads=lambda: a('ds_read_b64 v[18:19], v30'))
        a.label(Le)
        for aa in range(4):
            for cgi in range(2):
                acc = 'v[%d:%d]' % (20 + 4 * cgi, 23 + 4 * cgi)
                a('v_mfma_f32_4x4x4_16b_bf16 %s, v[18:19], v[%d:%d], %s cbsz:4 abid:%d' %
                  (acc, WO0 + aa * 4 + cgi * 2, WO0 + aa * 4 + cgi * 2 + 1, '0' if aa == 0 else acc, aa))
        a('v_lshlrev_b32 v10, 3, v0')
        a('s_lshl_b32 %s, %s, 9' % (sU[0], sW))
        a('s_lshl_b32 %s, %s, 11' % (sU[1], sWG))
        a('s_add_u32 %s, %s, %s' % (sU[0], sU[0], sU[1]))
        a('s_add_u32 %s, %s, 0x%x' % (sU[0], sU[0], YL_OFF + layer * YL_SET))
        a('v_bfi_b32 v12, -16, v20, %s' % sTAG)
        a('v_bfi_b32 v13, -16, v24, %s' % sTAG)
        lstore('buffer_store_dwordx2 v[12:13], v10, %s, %s offen' % (SRD_W, sU[0]))
        stamp(9 + layer)
        a.label(Lsk)

    def task_red(layer):
        Lsk = a.newlabel('L_sk')
        guard(layer, Lsk)
        only_wave(cfg.gr0 if layer == 0 else cfg.gr1, Lsk)
        set_b(layer)
        a('v_lshrrev_b32 v11, 2, v0')
        a('v_lshlrev_b32 v11, 14, v11')
        a('v_and_b32 v10, 3, v0')
        a('v_lshl_add_u32 v10, v10, 4, v11')
        a('s_lshl_b32 %s, %s, 11' % (sU[2], sH))
        a('s_lshl_b32 %s, %s, 6' % (sU[1], sSP))
        a('s_add_u32 %s, %s, %s' % (sU[2], sU[2], sU[1]))
        a('s_add_u32 %s, %s, 0x%x' % (sU[0], sU[2], YL_OFF + layer * YL_SET))
        a('s_add_u32 %s, %s, 0x40000' % (sU[1], sU[0]))
        def issue():
            a('buffer_load_dwordx4 v[12:15], v10, %s, %s offen sc1' % (SRD_W, sU[0]))
            a('buffer_load_dwordx4 v[16:19], v10, %s, %s offen sc1' % (SRD_W, sU[1]))
        poll(issue, 2, ['v%d' % i for i in range(12, 20)], sTAG, 'v22')
        stamp(11 + layer)
        R4 = ['v12', 'v13', 'v14', 'v15']
        for c in range(4): a('v_add_f32 v%d, v%d, v%d' % (12 + c, 12 + c, 16 + c))
        for m in ('row_ror:4 ' + DPP, 'row_ror:8 ' + DPP):
            for r in R4: a('v_add_f32_dpp %s, %s, %s %s' % (r, r, r, m))
        for sw in ('v_permlane16_swap_b32', 'v_permlane32_swap_b32'):
            for i, r in enumerate(R4): a('v_mov_b32 v%d, %s' % (16 + i, r))
            for i, r in enumerate(R4): a('%s %s, v%d' % (sw, r, 16 + i))
            for i, r in enumerate(R4): a('v_add_f32 %s, %s, v%d' % (r, r, 16 + i))
        for r in R4: a('v_bfi_b32 %s, -16, %s, %s' % (r, r, sTAG))
        xp_off(layer, sU[0])
        a('s_add_u32 %s, %s, %s' % (sU[0], sU[0], sU[2]))
        a('s_mov_b64 exec, 15')
        a('buffer_store_dwordx4 v[12:15], v10, %s, %s offen sc1' % (SRD_W, sU[0]))
        a('s_mov_b64 exec, -1')
        stamp(13 + layer)
        wait_loads(0)
        lds_flag(F_X + 4 * layer, sTAG, ['v10', 'v11'])
        a.label(Lsk)

    def row_addr():
        a('v_min_u32 v23, 55, v0')
        a('v_lshlrev_b32 v23, 5, v23')
    def row_issue(soff):
        def issue():
            a('buffer_load_dwordx4 v[10:13], v23, %s, %s offen sc1' % (SRD_W, soff))
            a('buffer_load_dwordx4 v[14:17], v23, %s, %s offen offset:16 sc1' % (SRD_W, soff))
        return issue

    def task_mix(layer):
        Lsk, Lo, Le = a.newlabel('L_sk'), a.newlabel('L_o'), a.newlabel('L_e')
        guard(layer, Lsk)
        set_b(layer)
        ROWB = L_COMB + layer * 8192 + 2 * 2048
        for i in range(24, 36): a('v_mov_b32 v%d, 0' % i)
        a('s_mul_i32 %s, %s, 896' % (sU[1], sW))
        a('v_lshl_add_u32 v47, v0, 4, %s' % sU[1])
        a('s_mov_b32 exec_hi, 0x00ffffff')
        a('global_load_dwordx4 v[24:27], v47, %s' % S_W1)
        a('global_load_dwordx4 v[28:31], v47, %s' % S_B1)
        a('global_load_dwordx4 v[32:35], v47, %s' % S_W2)
        a('s_mov_b64 exec, -1')
        a('v_bfe_u32 v46, v0, 2, 3')
        a('v_and_b32 v47, 3, v0')
        a('v_lshlrev_b32 v47, 2, v47')
        a('v_mad_u32_u24 v46, v46, 14, v47')
        if layer == 0:
            a('s_mul_i32 %s, %s, 896' % (sU[1], sB))
            a('s_mul_i32 %s, %s, 224' % (sU[2], sW))
            a('s_add_u32 %s, %s, %s' % (sU[1], sU[1], sU[2]))
            a('v_lshl_add_u32 v46, v46, 1, %s' % sU[1])
            a('v_add_u32 v47, 4, v46')
            a('v_min_u32 v47, %d, v47' % (8 * 896 - 4))
            a('global_load_dword v40, v46, %s' % S_X)
            a('global_load_dword v42, v47, %s' % S_X)
            issued(5)
        else:
            row_off(sU[1])
            a('s_mul_i32 %s, %s, 448' % (sU[2], sW))
            a('s_add_u32 %s, %s, %s' % (sU[1], sU[1], sU[2]))
            a('v_lshlrev_b32 v46, 2, v46')
            a('buffer_load_dwordx4 v[40:43], v46, %s, %s offen sc1' % (SRD_W, sU[1]))
            issued(4)
        xp_off(layer, sU[0])
        a('s_lshl_b32 %s, %s, 9' % (sU[1], sW))
        a('s_add_u32 %s, %s, %s' % (sU[0], sU[0], sU[1]))
        a('s_add_u32 %s, %s, 4096' % (sU[1], sU[0]))
        a('v_lshrrev_b32 v46, 5, v0')
        a('v_lshlrev_b32 v46, 13, v46')
        a('v_and_b32 v47, 31, v0')
        a('v_lshl_add_u32 v46, v47, 4, v46')
        lds_wait(F_X + 4 * layer, sTAG, ['v10', 'v11'])
        G = [10, 14, 18, 36]
        def issue():
            for i in range(4):
                a('buffer_load_dwordx4 v[%d:%d], v46, %s, %s offen offset:%d sc1' % (G[i], G[i] + 3, SRD_W, sU[i >> 1], 2048 * (i & 1)))
        poll(issue, 4, ['v%d' % (g + c) for g in G for c in range(4)], sTAG, 'v22')
        stamp(15 + layer)
        for c in range(4): a('v_add_f32 v%d, v%d, v%d' % (10 + c, 10 + c, 14 + c))
        for c in range(4): a('v_add_f32 v%d, v%d, v%d' % (18 + c, 18 + c, 36 + c))
        for c in range(4): a('v_add_f32 v%d, v%d, v%d' % (10 + c, 10 + c, 18 + c))
        for c in range(4): a('v_mov_b32 v%d, v%d' % (14 + c, 10 + c))
        for c in range(4): a('v_permlane32_swap_b32 v%d, v%d' % (10 + c, 14 + c))
        for c in range(4): a('v_add_f32 v%d, v%d, v%d' % (10 + c, 10 + c, 14 + c))
        Q4 = ['v10', 'v11', 'v12', 'v13']
        bf16r(Q4, 'v22')
        if layer == 0:
            a('v_and_b32 v41, 0xffff0000, v40\nv_lshlrev_b32 v40, 16, v40')
            a('v_and_b32 v43, 0xffff0000, v42\nv_lshlrev_b32 v42, 16, v42')
        else:
            for c in range(4): a('v_and_b32 v%d, 0xffff0000, v%d' % (40 + c, 40 + c))
        for c in range(4): a('v_add_f32 v%d, v%d, v%d' % (10 + c, 10 + c, 40 + c))
        bf16r(Q4, 'v22')
        a('s_lshl_b32 %s, %s, 9' % (sU[1], sW))
        a('s_add_u32 %s, %s, %d' % (sU[1], sU[1], ROWB))
        a('v_lshl_add_u32 v47, v47, 4, %s' % sU[1])
        a('s_mov_b32 exec_hi, 0')
        a('ds_write_b128 v47, v[10:13]')
        a('s_mov_b64 exec, -1')
        a('v_mov_b32 v46, %d' % (L_MBH + 16 * layer))
        a('v_mov_b32 v14, %d' % (L_CNT + C_ROW + 4 * layer))
        last_arriver(Lo, ['v14', 'v15'])
        a('v_lshlrev_b32 v22, 5, v0')
        a('v_mov_b32 v23, %s' % sSLOT)
        a('v_add_u32 v22, %d, v22' % ROWB)
        a('v_add_u32 v23, %d, v23' % ROWB)
        a('ds_read_b128 v[10:13], v22')
        a('ds_read_b128 v[14:17], v22 offset:16')
        a('ds_read_b64 v[40:41], v23')
        a('s_waitcnt lgkmcnt(0)')
        a('v_mov_b32 v42, v40\nv_mov_b32 v43, v41')
        if cfg.stamps:
            a('s_lshl_b32 %s, %s, 11' % (sU[1], sB))
            a('s_lshl_b32 %s, %s, 3' % (sU[2], sCOL))
            a('s_add_u32 %s, %s, %s' % (sU[1], sU[1], sU[2]))
            a('s_add_u32 %s, %s, 0x%x' % (sU[1], sU[1], XDBG_OFF + layer * 0x4000))
            a('v_mov_b32 v23, 0')
            a('s_mov_b64 exec, 1')
            a('buffer_store_dwordx2 v[42:43], v23, %s, %s offen' % (SRD_W, sU[1]))
            a('s_mov_b64 exec, -1')
        mb, r = ln_stats(X8, ['v18', 'v19', 'v20', 'v21'], padded=True)
        ln_apply(X8 + ['v40', 'v41'], mb, r, 'v22')
        mb, r = ln_stats(X8, ['v18', 'v19', 'v20', 'v21'], padded=True)
        ln_apply(['v40', 'v41'], mb, r, 'v22')
        a('s_mov_b64 exec, 1')
        a('ds_write_b128 v46, v[40:43]')
        a('s_mov_b64 exec, -1')
        lds_flag(F_H + 4 * layer, sTAG, ['v10', 'v11'])
        a('v_mov_b32 v16, v40\nv_mov_b32 v17, v41\nv_mov_b32 v18, v42\nv_mov_b32 v19, v43')
        service()
        a('s_branch %s' % Le)
        a.label(Lo)
        lds_wait(F_H + 4 * layer, sTAG, ['v10', 'v11'], reads=lambda: a('ds_read_b128 v[16:19], v46'))
        a.label(Le)
        stamp(21 + layer)
        k0 = -2.0 * 0.7978845608028654 * 1.4426950408889634
        a('s_mov_b32 %s, %s' % (sU[7], f32(k0 * 0.044715)))
        a('v_mov_b32 v22, %s' % f32(k0))
        for j in range(4):
            a('v_lshlrev_b32 v10, 16, v%d' % (24 + j))
            a('v_and_b32 v11, 0xffff0000, v%d' % (24 + j))
            a('v_lshlrev_b32 v12, 16, v%d' % (28 + j))
            a('v_and_b32 v13, 0xffff0000, v%d' % (28 + j))
            U = ['v36', 'v37', 'v38', 'v39']
            Z = ['v40', 'v41', 'v42', 'v43']
            for c in range(2):
                for e in range(2): a('v_mul_f32 %s, v%d, v%d' % (U[2 * c + e], 16 + c, 10 + e))
            for c in range(2): a('v_cvt_pk_bf16_f32 v%d, %s, %s' % (14 + c, U[2 * c], U[2 * c + 1]))
            for c in range(2):
                a('v_lshlrev_b32 %s, 16, v%d' % (U[2 * c], 14 + c))
                a('v_and_b32 %s, 0xffff0000, v%d' % (U[2 * c + 1], 14 + c))
            for c in range(2):
                for e in range(2): a('v_add_f32 %s, %s, v%d' % (U[2 * c + e], U[2 * c + e], 12 + e))
            for c in range(2): a('v_cvt_pk_bf16_f32 v%d, %s, %s' % (14 + c, U[2 * c], U[2 * c + 1]))
            for c in range(2):
                a('v_lshlrev_b32 %s, 16, v%d' % (U[2 * c], 14 + c))
                a('v_and_b32 %s, 0xffff0000, v%d' % (U[2 * c + 1], 14 + c))
            for i in range(4): a('v_mul_f32 %s, %s, %s' % (Z[i], U[i], U[i]))
            for i in range(4): a('v_fma_f32 %s, %s, %s, v22' % (Z[i], Z[i], sU[7]))
            for i in range(4): a('v_mul_f32 %s, %s, %s' % (Z[i], Z[i], U[i]))
            for i in range(4): a('v_exp_f32 %s, %s' % (Z[i], Z[i]))
            for i in range(4): a('v_add_f32 %s, 1.0, %s' % (Z[i], Z[i]))
            for i in range(4): a('v_rcp_f32 %s, %s' % (Z[i], Z[i]))
            for i in range(4): a('v_mul_f32 %s, %s, %s' % (U[i], U[i], Z[i]))
            for c in range(2): a('v_cvt_pk_bf16_f32 v%d, %s, %s' % (14 + c, U[2 * c], U[2 * c + 1]))
            for c in range(2):
                a('v_dot2_f32_bf16 v%d, v%d, v%d, %s' % (20 + c, 14 + c, 32 + j, '0' if j == 0 else 'v%d' % (20 + c)))
            if j == 1: service()
        wave_sum(['v20', 'v21'])
        a('s_lshl_b32 %s, %s, 3' % (sU[1], sW))
        a('s_add_u32 %s, %s, %d' % (sU[1], sU[1], L_MIX + layer * 32))
        a('v_mov_b32 v10, %s' % sU[1])
        a('s_mov_b32 exec_lo, 0')
        a('s_mov_b32 exec_hi, 0x80000000')
        a('ds_write_b64 v10, v[20:21]')
        a('s_mov_b64 exec, -1')
        a('v_mov_b32 v10, %d' % (L_CNT + C_MIX + 4 * layer))
        Ld = a.newlabel('L_md')
        last_arriver(Ld, ['v10', 'v11'])
        a('v_mov_b32 v10, %d' % (L_MIX + layer * 32))
        a('ds_read_b128 v[12:15], v10')
        a('ds_read_b128 v[24:27], v10 offset:16')
        a('s_waitcnt lgkmcnt(0)')
        a('v_add_f32 v12, v12, v14\nv_add_f32 v13, v13, v15\nv_add_f32 v24, v24, v26\nv_add_f32 v25, v25, v27')
        a('v_add_f32 v12, v12, v24\nv_add_f32 v13, v13, v25')
        bf16r(['v12', 'v13'], 'v22')
        a('v_add_f32 v12, %s, v12\nv_add_f32 v13, %s, v13' % (sB2V, sB2V))
        bf16r(['v12', 'v13'], 'v22')
        a('v_add_f32 v12, v12, v18\nv_add_f32 v13, v13, v19')
        if layer == 0:
            bf16r(['v12', 'v13'], 'v22')
            a('v_or_b32 v12, 1, v12\nv_or_b32 v13, 1, v13')
            row_off(sU[1], rep=False)
            a('s_lshl_b32 %s, %s, 3' % (sU[2], sCOL))
            a('s_add_u32 %s, %s, %s' % (sU[1], sU[1], sU[2]))
            a('v_lshlrev_b32 v11, 11, v0')
            a('s_mov_b64 exec, %d' % (0xff if cfg.R == 8 else 1))
            a('buffer_store_dwordx2 v[12:13], v11, %s, %s offen sc1' % (SRD_W, sU[1]))
            a('s_mov_b64 exec, -1')
            stamp(23)
            wait_loads(0)
            lds_flag(F_Y, sTAG, ['v10', 'v11'])
        else:
            a('v_cvt_pk_bf16_f32 v12, v12, v13')
            a('s_mul_i32 %s, %s, 896' % (sU[1], sB))
            a('s_lshl_b32 %s, %s, 2' % (sU[2], sCOL))
            a('s_add_u32 %s, %s, %s' % (sU[1], sU[1], sU[2]))
            a('v_mov_b32 v10, %s' % sU[1])
            a('s_mov_b64 exec, 1')
            a('global_store_dword v10, v12, %s' % S_OUT)
            a('s_mov_b64 exec, -1')
        a.label(Ld)
        stamp(17 + layer)
        a.label(Lsk)

    def task_qproj():
        Lsk = a.newlabel('L_sk')
        guard(0, Lsk)
        only_wave(cfg.gp, Lsk)
        set_b(0)
        row_off(sU[5])
        qproj_pre()
        row_addr()
        lds_wait(F_Y, sTAG, ['v10', 'v11'])
        poll(row_issue(sU[5]), 2, X8, '1', 'v18')
        stamp(19)
        for x in X8: a('v_and_b32 %s, 0xffff0000, %s' % (x, x))
        qproj_core(sB, 1)
        stamp(20)
        a.label(Lsk)

    def task_q0next():
        Lsk = a.newlabel('L_sk')
        only_wave(cfg.gp, Lsk)
        a('s_cmp_ge_u32 %s, 7' % sP)
        a('s_cbranch_scc1 %s' % Lsk)
        a('s_add_u32 %s, %s, 1' % (sB, sP))
        q0_task(sB)
        a.label(Lsk)

    a.label('L_main')
    task_attn(0)
    task_attn(1)
    task_oproj(0)
    task_oproj(1)
    task_q0next()
    task_red(0)
    task_red(1)
    task_mix(0)
    task_mix(1)
    task_qproj()
    a('s_add_u32 %s, %s, 1' % (sP, sP))
    a('s_cmp_lt_u32 %s, 9' % sP)
    a('s_cbranch_scc1 L_main')
    a.label('L_exit')
    a('s_endpgm')

    def attn(par):
        a.label('L_attn%d' % par)
        H = [par * 7 + k for k in range(7)]
        a('v_and_b32 v10, 1, v0')
        a('v_lshrrev_b32 v11, 4, v0')
        a('v_lshlrev_b32 v11, 4, v11')
        a('v_lshl_add_u32 v10, v10, 9, v11')
        a('v_add_u32 v10, %s, v10' % sCOMB)
        a('s_waitcnt lgkmcnt(0)')
        for s in range(4): a('ds_read_b128 v[%d:%d], v10 offset:%d' % (28 + 4 * s, 31 + 4 * s, 64 * s))
        for s in range(8):
            a('s_waitcnt lgkmcnt(%d)' % (3 if s < 5 else 7 - s))
            f = 28 + 4 * (s & 3)
            for t in range(4):
                acc = 'v[%d:%d]' % (12 + 4 * t, 15 + 4 * t)
                a('v_mfma_f32_16x16x32_bf16 %s, %s, v[%d:%d], %s' % (acc, hreg(H[t], 4 * s, 4), f, f + 3, '0' if s == 0 else acc))
            if s < 4: a('ds_read_b128 v[%d:%d], v10 offset:%d' % (f, f + 3, 64 * (s + 4)))
        Ln = a.newlabel('L_n')
        a('s_cmp_eq_u32 %s, 0' % sPASS)
        a('s_cbranch_scc1 %s' % Ln)
        a('s_lshl_b32 %s, %s, 3' % (sLIM, sB))
        a('s_add_u32 %s, %s, 20' % (sLIM, sLIM))
        a.label(Ln)
        service()
        a('s_add_u32 %s, %s, %d' % (sU[0], sRING, L_HOME + (par ^ 1) * 8192))
        a('v_add_u32 v8, %s, %s' % (sU[0], vVA))
        a('v_xor_b32 v9, 128, v8')
        items = [(kg, cg) for kg in range(4) for cg in range(4)]
        def rd(i, slot):
            kg, cg = items[i]
            a('ds_read_b64_tr_b16 v[%d:%d], v%d offset:%d' % (36 + 2 * slot, 37 + 2 * slot, 8 + (cg & 1), (cg >> 1) * 256 + kg * 2048))
        for i in range(6): rd(i, i)
        S = ['v%d' % i for i in range(12, 28)]
        a('v_max3_f32 v10, v12, v13, v14')
        a('v_max3_f32 v11, v15, v16, v17')
        a('v_max3_f32 v10, v10, v18, v19')
        a('v_max3_f32 v11, v11, v20, v21')
        a('v_max3_f32 v10, v10, v22, v23')
        a('v_max3_f32 v11, v11, v24, v25')
        a('v_max3_f32 v10, v10, v26, v27')
        a('v_max_f32 v10, v10, v11')
        xrow('v_max_f32', 'v10', 'v11')
        a('v_mul_f32 v10, %s, v10' % sC)
        for s in S: a('v_fma_f32 %s, %s, %s, -v10' % (s, s, sC))
        for s in S: a('v_exp_f32 %s, %s' % (s, s))
        for t in range(4):
            a('v_cvt_pk_bf16_f32 v%d, v%d, v%d' % (28 + 2 * t, 12 + 4 * t, 13 + 4 * t))
            a('v_cvt_pk_bf16_f32 v%d, v%d, v%d' % (29 + 2 * t, 14 + 4 * t, 15 + 4 * t))
        for i in range(8): a('v_add_f32 v%d, v%d, v%d' % (12 + i, 12 + i, 20 + i))
        for i in range(4): a('v_add_f32 v%d, v%d, v%d' % (12 + i, 12 + i, 16 + i))
        a('v_add_f32 v12, v12, v14\nv_add_f32 v13, v13, v15')
        a('v_add_f32 v11, v12, v13')
        xrow('v_add_f32', 'v11', 'v12')
        first = [True] * 4
        def pv(t, kg, cg, breg):
            acc = 'v[%d:%d]' % (12 + 4 * cg, 15 + 4 * cg)
            a('v_mfma_f32_4x4x4_16b_bf16 %s, v[%d:%d], %s, %s cbsz:4 abid:%d' %
              (acc, 28 + 2 * t, 29 + 2 * t, breg, '0' if first[cg] else acc, 4 * kg))
            first[cg] = False
        def lds_group(lo, hi, nxt):
            a('s_waitcnt lgkmcnt(0)')
            for i in range(lo, hi):
                kg, cg = items[i]
                s = (i - lo)
                pv(3, kg, cg, 'v[%d:%d]' % (36 + 2 * s, 37 + 2 * s))
            for j, i in enumerate(nxt): rd(i, j)
        def reg_tile(t):
            for kg in range(4):
                for cg in range(4):
                    pv(t, kg, cg, hreg(H[4 + t], (kg * 4 + cg) * 2, 2))
        lds_group(0, 6, range(6, 12))
        reg_tile(0)
        lds_group(6, 12, range(12, 16))
        reg_tile(1)
        lds_group(12, 16, [])
        reg_tile(2)
        Ln = a.newlabel('L_n')
        a('s_cmp_eq_u32 %s, 0' % sPASS)
        a('s_cbranch_scc1 %s' % Ln)
        a('s_lshl_b32 %s, %s, 3' % (sLIM, sB))
        a('s_add_u32 %s, %s, 24' % (sLIM, sLIM))
        a.label(Ln)
        a('s_branch L_comb')

    attn(0)
    attn(1)
    a.label('L_comb')
    a('v_lshl_add_u32 v28, v0, 2, %s' % sCOMB)
    for cg in range(4):
        a('ds_write2st64_b32 v28, v%d, v%d offset0:%d offset1:%d' % (12 + 4 * cg, 13 + 4 * cg, cg, 4 + cg))
    a('s_lshl_b32 %s, %s, 6' % (sU[0], sPASS))
    a('s_lshl_b32 %s, %s, 4' % (sU[1], sW))
    a('s_add_u32 %s, %s, %s' % (sU[1], sU[0], sU[1]))
    a('s_add_u32 %s, %s, %d' % (sU[1], sU[1], L_ML))
    a('v_lshl_add_u32 v29, v0, 3, %s' % sU[1])
    a('s_mov_b64 exec, 3')
    a('ds_write_b64 v29, v[10:11]')
    a('s_mov_b64 exec, -1')
    a('s_lshl_b32 %s, %s, 2' % (sU[1], sPASS))
    a('s_add_u32 %s, %s, %d' % (sU[1], sU[1], L_CNT + C_COMB))
    a('v_mov_b32 v28, %s' % sU[1])
    last_arriver('L_comb_done', ['v28', 'v29'])
    a('s_lshl_b32 %s, %s, 13' % (sU[1], sPASS))
    a('s_add_u32 %s, %s, %d' % (sU[1], sU[1], L_COMB))
    a('v_lshl_add_u32 v10, v0, 4, %s' % sU[1])
    a('v_lshrrev_b32 v11, 5, v0')
    a('s_add_u32 %s, %s, %d' % (sU[0], sU[0], L_ML))
    a('v_lshl_add_u32 v46, v11, 3, %s' % sU[0])
    for w in range(4): a('ds_read_b64 v[%d:%d], v46 offset:%d' % (12 + 2 * w, 13 + 2 * w, 16 * w))
    for w in range(4): a('ds_read_b128 v[%d:%d], v10 offset:%d' % (20 + 4 * w, 23 + 4 * w, 2048 * w))
    a('s_waitcnt lgkmcnt(4)')
    a('v_max3_f32 v44, v12, v14, v16')
    a('v_max_f32 v44, v44, v18')
    for w in range(4): a('v_sub_f32 v%d, v%d, v44' % (12 + 2 * w, 12 + 2 * w))
    for w in range(4): a('v_exp_f32 v%d, v%d' % (12 + 2 * w, 12 + 2 * w))
    a('v_mul_f32 v45, v12, v13')
    for w in range(1, 4): a('v_fmac_f32 v45, v%d, v%d' % (12 + 2 * w, 13 + 2 * w))
    a('v_rcp_f32 v46, v45')
    a('v_log_f32 v45, v45')
    for w in range(4): a('v_mul_f32 v%d, v%d, v46' % (12 + 2 * w, 12 + 2 * w))
    a('v_add_f32 v44, v44, v45')
    for w in range(4): a('v_mov_b32 v%d, v%d' % (13 + 2 * w, 12 + 2 * w))
    for w in range(4): a('v_permlane32_swap_b32 v%d, v%d' % (12 + 2 * w, 13 + 2 * w))
    a('s_mul_i32 %s, %s, 0x%x' % (sU[0], sPASS, OB_SET))
    a('s_mul_i32 %s, %s, 2560' % (sU[1], sWG))
    a('s_add_u32 %s, %s, %s' % (sU[0], sU[0], sU[1]))
    a('v_lshrrev_b32 v45, 2, v0')
    a('v_mul_u32_u24 v45, 80, v45')
    a('v_and_b32 v46, 3, v0')
    a('v_lshl_add_u32 v45, v46, 4, v45')
    for half in range(2):
        a('s_waitcnt lgkmcnt(0)')
        o = 36 + 4 * half
        for c in range(4): a('v_mul_f32 v%d, v%d, v%d' % (o + c, 20 + c, 12 + half))
        for w in range(1, 4):
            for c in range(4): a('v_fmac_f32 v%d, v%d, v%d' % (o + c, 20 + 4 * w + c, 12 + 2 * w + half))
        if half == 0:
            for w in range(4): a('ds_read_b128 v[%d:%d], v10 offset:%d' % (20 + 4 * w, 23 + 4 * w, 2048 * w + 1024))
        for c in range(4): a('v_bfi_b32 v%d, -16, v%d, %s' % (o + c, o + c, sTAG))
        lstore('buffer_store_dwordx4 v[%d:%d], v45, %s, %s offen offset:%d' % (o, o + 3, SRD_W, sU[0], 1280 * half))
    a('v_bfi_b32 v44, -16, v44, %s' % sTAG)
    a('v_and_b32 v46, 15, v0')
    a('v_lshl_add_u32 v46, v11, 4, v46')
    a('v_mul_u32_u24 v46, 80, v46')
    a('s_mov_b32 exec_lo, 0xffff')
    a('s_mov_b32 exec_hi, 0xffff')
    lstore('buffer_store_dword v44, v46, %s, %s offen offset:64' % (SRD_W, sU[0]))
    a('s_mov_b64 exec, -1')
    a.label('L_comb_done')
    a('s_setpc_b64 %s' % RET_A)

    t0, t1, t2, t3, t4 = sT
    a.label('L_service')
    a('s_getreg_b32 %s, hwreg(HW_REG_IB_STS)' % t0)
    a('s_and_b32 %s, %s, 15' % (t1, t0))
    a('s_bfe_u32 %s, %s, 0x20016' % (t0, t0))
    a('s_lshl4_add_u32 %s, %s, %s' % (t1, t0, t1))
    a('s_sub_i32 %s, %s, %s' % (sDONE, sOPS, t1))
    a('s_bfm_b64 s[60:61], %s, 0' % t1)
    a('s_and_b64 s[60:61], s[60:61], %s' % sHIST)
    a('s_bcnt1_i32_b64 %s, s[60:61]' % t0)
    a('s_sub_i32 %s, %s, %s' % (t0, sISS, t0))
    a('s_max_i32 %s, %s, %s' % (sLAND, sLAND, t0))
    a.label('L_sv_lim')
    a('s_and_b32 %s, %s, 7' % (t0, sMOV))
    a('s_cmp_ge_u32 %s, 5' % t0)
    a('s_addc_u32 %s, %s, 2' % (t0, sMOV))
    a('s_or_b32 %s, %s, 7' % (t1, sLIM))
    a('s_min_u32 %s, %s, %s' % (t0, t0, t1))
    a('s_min_u32 %s, %s, 64' % (t0, t0))
    a('s_lshl_b32 %s, %s, 3' % (t0, t0))
    a('s_add_u32 %s, %s, %d' % (t1, sLAND, cfg.W))
    a('s_min_u32 %s, %s, %s' % (t4, t0, t1))
    a.label('L_sv_iss')
    a('s_cmp_ge_u32 %s, %s' % (sISS, t4))
    a('s_cbranch_scc1 L_sv_mov')
    a('s_mov_b32 m0, %s' % sM0N)
    a('v_xor_b32 %s, %s, %s' % (vS[0], sXR, vCUR))
    a('s_add_u32 %s, %s, 1' % (sISS, sISS))
    a('buffer_load_dwordx4 %s, %s, %s offen nt lds' % (vS[0], SRD_S, sGOFF))
    a('s_lshl_b64 %s, %s, 1' % (sHIST, sHIST))
    a('s_or_b32 %s, %s, 1' % (sHLO, sHLO))
    a('s_add_u32 %s, %s, 1' % (sOPS, sOPS))
    a('s_add_u32 %s, %s, 1024' % (sM0N, sM0N))
    a('s_add_u32 %s, %s, 4096' % (sGOFF, sGOFF))
    a('s_add_u32 %s, %s, %s' % (sXR, sXR, sDX))
    a('s_and_b32 %s, %s, 255' % (sXR, sXR))
    a('s_and_b32 %s, %s, 7' % (t0, sISS))
    a('s_cbranch_scc1 L_sv_iss')
    a('s_lshr_b32 %s, %s, 3' % (t0, sISS))
    a('s_lshr_b32 %s, %s, 6' % (t1, sISS))
    a('s_xor_b32 %s, %s, %s' % (t2, t0, t1))
    a('s_and_b32 %s, %s, 1' % (t2, t2))
    a('s_lshl_b32 %s, %s, 13' % (t2, t2))
    a('s_add_u32 %s, %s, %s' % (sM0N, sRING, t2))
    a('s_and_b32 %s, %s, 7' % (t0, t0))
    a('s_cmp_eq_u32 %s, 7' % t0)
    a('s_cselect_b32 %s, %d, 0' % (t2, L_HOME))
    a('s_add_u32 %s, %s, %s' % (sM0N, sM0N, t2))
    a('s_and_b32 %s, %s, 3' % (t2, t0))
    a('s_cbranch_scc1 L_sv_iss')
    a('s_lshl_b32 %s, %s, 25' % (t1, t1))
    a('s_add_u32 %s, %s, %s' % (sGOFF, sGB, t1))
    a('s_cmp_eq_u32 %s, 0' % t0)
    a('s_cselect_b64 s[4:5], %s, %s' % (S_K, S_V))
    a('s_cselect_b32 %s, 32, 128' % sDX)
    a('s_cbranch_scc1 L_sv_k')
    a('v_mov_b32 %s, %s' % (vCUR, vBV))
    a('s_branch L_sv_iss')
    a.label('L_sv_k')
    a('v_mov_b32 %s, %s' % (vCUR, vBK))
    a('s_branch L_sv_iss')
    a.label('L_sv_mov')
    a('s_lshl_b32 %s, %s, 3' % (t0, sMOV))
    a('s_add_u32 %s, %s, 8' % (t0, t0))
    a('s_cmp_lt_i32 %s, %s' % (sLAND, t0))
    a('s_cbranch_scc1 L_sv_ret')
    a('s_and_b32 %s, %s, 7' % (t0, sMOV))
    a('s_cmp_eq_u32 %s, 7' % t0)
    a('s_cbranch_scc1 L_sv_adv')
    a('s_cmp_ge_u32 %s, %s' % (sMOV, sLIM))
    a('s_cbranch_scc1 L_sv_ret')
    a('s_lshr_b32 %s, %s, 3' % (t1, sMOV))
    a('s_xor_b32 %s, %s, %s' % (t1, t1, sMOV))
    a('s_and_b32 %s, %s, 1' % (t1, t1))
    a('s_lshl_b32 %s, %s, 13' % (t1, t1))
    a('s_add_u32 %s, %s, %s' % (t1, t1, sRING))
    a('s_bitcmp1_b32 %s, 2' % sMOV)
    a('s_cbranch_scc1 L_sv_mv')
    a('v_add_u32 %s, %s, %s' % (vS[0], t1, vKA))
    a('v_xor_b32 %s, 64, %s' % (vS[1], vS[0]))
    a('v_xor_b32 %s, 128, %s' % (vS[2], vS[0]))
    a('v_xor_b32 %s, 192, %s' % (vS[3], vS[0]))
    def tree(bits, prefix, leaf):
        if not bits:
            leaf(prefix); return
        b = bits[0]
        L = a.newlabel('L_d')
        a('s_bitcmp1_b32 %s, %d' % (sMOV, b))
        a('s_cbranch_scc1 %s' % L)
        tree(bits[1:], prefix, leaf)
        a.label(L)
        tree(bits[1:], prefix | (1 << b), leaf)
    def leafK(n):
        hidx = (n >> 3) * 7 + (n & 7)
        for s in range(8):
            a('ds_read_b128 %s, %s offset:%d' % (hreg(hidx, 4 * s, 4), vS[s & 3], (s >> 2) * 256))
        a('s_branch L_sv_mvd')
    tree([3, 1, 0], 0, leafK)
    a.label('L_sv_mv')
    a('v_add_u32 %s, %s, %s' % (vS[0], t1, vVA))
    a('v_xor_b32 %s, 128, %s' % (vS[1], vS[0]))
    def leafV(n):
        if (n & 7) == 7:
            a('s_branch L_sv_mvd'); return
        hidx = (n >> 3) * 7 + (n & 7)
        for kg in range(4):
            for cg in range(4):
                a('ds_read_b64_tr_b16 %s, %s offset:%d' % (hreg(hidx, (kg * 4 + cg) * 2, 2), vS[cg & 1], (cg >> 1) * 256 + kg * 2048))
        a('s_branch L_sv_mvd')
    tree([3, 1, 0], 4, leafV)
    a.label('L_sv_mvd')
    a('s_waitcnt lgkmcnt(0)')
    a.label('L_sv_adv')
    a('s_add_u32 %s, %s, 1' % (sMOV, sMOV))
    a('s_branch L_sv_lim')
    a.label('L_sv_ret')
    a('s_setpc_b64 %s' % RET_S)

    a.raw('.section .rodata,"a"')
    a.raw('.p2align 6')
    a.raw('.amdhsa_kernel %s_kernel' % NAME)
    a.raw('  .amdhsa_next_free_vgpr 512')
    a.raw('  .amdhsa_next_free_sgpr 96')
    a.raw('  .amdhsa_accum_offset 256')
    a.raw('  .amdhsa_group_segment_fixed_size 0')
    a.raw('  .amdhsa_kernarg_size 104')
    a.raw('  .amdhsa_user_sgpr_count 2')
    a.raw('  .amdhsa_user_sgpr_kernarg_segment_ptr 1')
    a.raw('  .amdhsa_system_sgpr_workgroup_id_x 1')
    a.raw('  .amdhsa_float_denorm_mode_32 3')
    a.raw('.end_amdhsa_kernel')
    return a

if __name__ == '__main__':
    cfg = Cfg()
    out = 'cdna_kernels/%s.s' % NAME
    for arg in sys.argv[1:]:
        k, val = arg.split('=')
        if k == 'out': out = val
        else: setattr(cfg, k, int(val))
    a = gen(cfg)
    open(out, 'w').write(a.text())
    print('wrote', out, a.count, 'instructions')
```

```python
import re

_REG = re.compile(r'^(-|\|)?(?:abs\()?([vas])(?:(\d+)|\[(\d+):(\d+)\])\)?\|?$')

def regs_of(tok):
    t = tok.strip()
    if t in ('vcc',): return {('s', 106), ('s', 107)}
    if t == 'vcc_lo': return {('s', 106)}
    if t == 'vcc_hi': return {('s', 107)}
    if t == 'exec': return {('s', 126), ('s', 127)}
    if t == 'exec_lo': return {('s', 126)}
    if t == 'exec_hi': return {('s', 127)}
    if t == 'm0': return {('s', 124)}
    m = _REG.match(t)
    if not m: return set()
    f = m.group(2)
    if m.group(3) is not None:
        return {(f, int(m.group(3)))}
    return {(f, i) for i in range(int(m.group(4)), int(m.group(5)) + 1)}

def split_ops(s):
    ops, depth, cur = [], 0, ''
    for ch in s + ',':
        if ch in '[(': depth += 1
        elif ch in '])': depth -= 1
        if ch == ',' and depth == 0:
            ops.append(cur.strip()); cur = ''
        else: cur += ch
    return [o for o in ops if o]

TRANS = ('v_exp_f32', 'v_log_f32', 'v_rcp_f32', 'v_rsq_f32', 'v_sqrt_f32', 'v_sin_f32', 'v_cos_f32')
VCC = {('s', 106), ('s', 107)}

class Insn:
    def __init__(self, text):
        self.text = text
        parts = text.split(None, 1)
        self.mn = parts[0]
        rest = parts[1] if len(parts) > 1 else ''
        raw = split_ops(rest)
        self.mods = []
        ops = []
        for o in raw:
            p = o.split()
            ops.append(p[0]); self.mods += p[1:]
        self.ops = ops
        mn = self.mn
        self.is_mfma = mn.startswith('v_mfma')
        self.is_valu = mn.startswith('v_') and not self.is_mfma
        self.is_salu = mn.startswith('s_')
        self.is_ds = mn.startswith('ds_')
        self.is_vmem = mn.startswith(('buffer_', 'global_', 'flat_'))
        self.is_dpp = any(m.startswith(('quad_perm', 'row_', 'wave_')) for m in self.mods) or mn.endswith('_dpp')
        self.is_trans = mn.replace('_e32', '').replace('_e64', '') in TRANS
        self.is_dot = mn.startswith('v_dot')
        self.is_perml = mn.startswith('v_permlane')
        self.is_rdlane = mn.startswith(('v_readlane', 'v_readfirstlane'))
        self.is_wrlane = mn.startswith('v_writelane')
        self.lds_dma = self.is_vmem and ('lds' in self.mods or '_lds_' in mn)
        w, r = set(), set()
        R = [regs_of(o) for o in ops]
        self.srcC = set(); self.srcAB = set(); self.lanesel = set(); self.store_data = set()
        if self.is_mfma:
            w |= R[0]; self.srcAB = R[1] | R[2]; self.srcC = R[3]; r |= self.srcAB | self.srcC
            if '4x4x4' in mn: self.passes = 2
            elif '16x16x32' in mn or '16x16x16' in mn: self.passes = 4
            elif '32x32x16' in mn or '32x32x8' in mn: self.passes = 8
            else: raise ValueError(mn)
        elif self.is_valu:
            if mn.startswith('v_cmp'):
                w |= R[0]
                for x in R[1:]: r |= x
            elif self.is_perml and 'swap' in mn:
                w |= R[0] | R[1]; r |= R[0] | R[1]
            elif mn.startswith(('v_add_co', 'v_sub_co', 'v_addc_co', 'v_subb_co', 'v_subrev_co')):
                w |= R[0] | R[1]
                for x in R[2:]: r |= x
            else:
                w |= R[0]
                for x in R[1:]: r |= x
                if mn.startswith(('v_fmac', 'v_dot2c', 'v_pk_fmac')) or self.is_wrlane or self.is_dpp: r |= R[0]
                if mn.startswith('v_cndmask') and len(ops) == 3: r |= VCC
                if (self.is_rdlane or self.is_wrlane) and len(ops) == 3: self.lanesel = R[2]
        elif self.is_ds:
            if mn.startswith(('ds_read', 'ds_bpermute', 'ds_permute', 'ds_swizzle')) or '_rtn' in mn:
                w |= R[0]
                for x in R[1:]: r |= x
            else:
                for x in R: r |= x
        elif self.is_vmem:
            if self.lds_dma:
                for x in R: r |= x
                r |= {('s', 124)}
            elif '_load' in mn:
                w |= R[0]
                for x in R[1:]: r |= x
            else:
                for x in R: r |= x
                if mn.startswith('buffer_store'): d = R[0]
                elif mn.startswith('global_store'): d = R[1]
                else: d = set()
                if len(d) >= 3: self.store_data = d
                if 'atomic' in mn and 'sc0' in self.mods: w |= R[0]
        elif self.is_salu:
            if mn.startswith(('s_cmp', 's_cbranch', 's_branch', 's_waitcnt', 's_nop', 's_barrier', 's_endpgm',
                              's_setpc', 's_sleep', 's_setprio', 's_bitcmp')):
                for x in R: r |= x
            else:
                if R: w |= R[0]
                for x in R[1:]: r |= x
                if 'saveexec' in mn: w |= regs_of('exec')
        self.w, self.r = w, r
        self.states = 1
        if mn == 's_nop': self.states = int(ops[0], 0) + 1

def vg(s): return {x for x in s if x[0] in 'va'}
def sg(s): return {x for x in s if x[0] == 's'}

def need(p, c):
    n = 0
    if p.is_valu:
        pv, ps = vg(p.w), sg(p.w)
        if pv:
            if c.is_valu and c.is_dpp and pv & c.r: n = max(n, 2)
            if c.is_rdlane and pv & c.r: n = max(n, 1)
            if c.is_perml and pv & c.r: n = max(n, 2)
            if c.is_mfma and pv & c.r: n = max(n, 2)
            if p.is_trans and (c.is_valu or c.is_mfma) and pv & c.r: n = max(n, 1)
            if p.is_trans and (c.is_vmem or c.is_ds) and pv & c.r: n = max(n, 1)
            if p.is_dot and (pv & (c.r | c.w)):
                same_acc = c.is_dot and c.mn == p.mn and not (pv & (regs_of(c.ops[1]) | regs_of(c.ops[2])))
                if not same_acc: n = max(n, 3)
        if ps:
            if c.is_valu and ps & c.r: n = max(n, 2)
            if ps & c.lanesel: n = max(n, 4)
            if c.is_vmem and ps & c.r: n = max(n, 5)
            if c.is_salu and ps & c.r: n = max(n, 1)
    if p.is_mfma:
        big = {2: 5, 4: 8, 8: 12}[p.passes]
        if c.is_mfma:
            if p.w & c.srcAB: n = max(n, big)
            if p.w & c.srcC:
                if p.w == c.srcC and p.passes == c.passes: n = max(n, 2 if p.passes == 2 else 0)
                else: n = max(n, {2: 4, 4: 6, 8: 10}[p.passes])
            elif p.w & c.w: n = max(n, big)
        elif (c.is_valu or c.is_vmem or c.is_ds) and p.w & (c.r | c.w): n = max(n, big)
        if c.is_valu and p.srcC & c.w: n = max(n, {2: 1, 4: 3, 8: 7}[p.passes])
    if p.store_data and p.store_data & c.w: n = max(n, 2)
    if p.is_salu and ('s', 124) in p.w and c.lds_dma: n = max(n, 1)
    return n

def worst(p):
    if p.is_mfma: return {2: 5, 4: 8, 8: 12}[p.passes]
    if p.is_valu:
        if sg(p.w): return 5
        if p.is_dot: return 3
        return 2
    if p.store_data: return 2
    if p.is_salu and ('s', 124) in p.w: return 1
    return 0

class Asm:
    def __init__(self):
        self.lines = []
        self.hist = []
        self.nlab = 0
        self.count = 0
    def _push(self, ins):
        self.hist = [(p, d + ins.states) for p, d in self.hist if d + ins.states < 16]
        self.hist.append((ins, 0))
        self.lines.append('    ' + ins.text)
        self.count += 1
    def nop(self, n):
        while n > 0:
            k = min(n, 16)
            self._push(Insn('s_nop %d' % (k - 1))); n -= k
    def fence(self):
        n = 0
        for p, d in self.hist: n = max(n, worst(p) - d)
        self.nop(n)
    def __call__(self, text):
        for line in text.strip().split('\n'):
            line = line.split(';')[0].strip()
            if not line: continue
            ins = Insn(line)
            if ins.mn.startswith(('s_cbranch', 's_branch', 's_call', 's_setpc', 's_swappc')):
                n = 0
                for p, d in self.hist: n = max(n, worst(p) - d - 1)
                self.nop(n)
            n = 0
            for p, d in self.hist: n = max(n, need(p, ins) - d)
            self.nop(n)
            self._push(ins)
    def nofence(self, text):
        ins = Insn(text)
        n = 0
        for p, d in self.hist: n = max(n, need(p, ins) - d)
        self.nop(n)
        self._push(ins)
    def label(self, name):
        self.lines.append(name + ':')
    def newlabel(self, stem='L'):
        self.nlab += 1
        return '%s_%d' % (stem, self.nlab)
    def comment(self, s):
        self.lines.append('    ; ' + s)
    def raw(self, s):
        self.lines.append(s)
    def text(self):
        return '\n'.join(self.lines) + '\n'
```

```python
import sys, struct
from asmlib import Asm

NAME = "interleave_layers__gqa_block_cached__mixer_token_mlp__decode"
HEADER = open('cdna_kernels/%s.s.ref' % NAME).read().split('; Override launch')[0]

def f32(x): return '0x%08x' % struct.unpack('<I', struct.pack('<f', x))[0]

class Cfg:
    G, D = 2, 3
    stamps = 0
    ELO = 111
    force_global = 0
    tmo = 400000
    quick = 1
    KN = 3
    KX = 6
    dX = 4
    early = 1
    gohook = 3

OB_OFF, OB_SET = 0x0, 0xA0000
YL_OFF, YL_SET = 0x280000, 0x80000
QB_OFF = 0x480000
XP_OFF = 0x4C0000
ROW_OFF = 0x4E0000
TB_OFF = 0x500000
XS_OFF = 0x508000
XDBG_OFF = 0x510000
XG_OFF = 0x600000
DBG_OFF = 0x800000
WQS_OFF = 0xA00000
WS_BYTES = 0xE00000
L_TBL = 0
L_CNT = 10240
(C_COMB, C_DONE, C_QP, C_CLR, C_WQ, F_GO, F_RDY, F_Q, _q1, F_O, _o1, F_X, _x1, F_ROW, C_TG) = range(15)
L_ML = L_CNT + 128
L_MBO = L_ML + 64
L_MX = L_MBO + 64
L_QP = L_MX + 128
L_XR = L_QP + 256
L_NST = 11264
L_ROW = 12288
L_RING, L_HOME = 14336, 65536
L_COMB = L_WQ = L_RING + 131072
L_QS = L_COMB + 8192
L_INB = L_QS + 2048
L_QIN = L_INB + 2 * 2304
L_XG = L_QIN + 2048
LDS_BYTES = L_XG + 512
assert LDS_BYTES <= 163840 and L_XR + 256 <= L_NST

S_X, S_K, S_V, S_WQ, S_WO, S_W1, S_B1, S_W2, S_B2, S_OUT, S_DBG, S_WS = \
    's[16:17]', 's[18:19]', 's[20:21]', 's[22:23]', 's[24:25]', 's[28:29]', 's[30:31]', 's[32:33]', 's[34:35]', 's[36:37]', 's[38:39]', 's[40:41]'
SRD_K, SRD_V, SRD_W = 's[4:7]', 's[8:11]', 's[12:15]'
sNEXT = 's[0:1]'
sC0, sC1 = 's2', 's3'
sAB, sAS, sRQ, sTG = 's18', 's19', 's20', 's21'
sFIN, sXCC = 's26', 's27'
sLOC, sXN = 's40', 's41'
sW, sH, sSP, sWG = 's42', 's43', 's44', 's45'
sVW, sWQS, sMOV, sLIM, sSEQ, sOPS, sDONE = 's46', 's47', 's48', 's49', 's50', 's51', 's52'
sTB, sRING = 's53', 's54'
sSQ = ['s55', 's56', 's57', 's58']
sT = ['s59', 's60', 's61']
RET_K = 's[62:63]'
RET_S, RET_A, RET_F = 's[64:65]', 's[66:67]', 's[90:91]'
sP, sTMO, sB2V, sC = 's68', 's69', 's70', 's71'
sNC, sPASS, sB, sTAG = 's72', 's73', 's74', 's75'
sU = ['s%d' % i for i in range(76, 89)]
sKC = 's89'
sSTAMP = 's[92:93]'
sSTO = 's94'
sKB, sKS, sKL, sKN, sKT = 's95', 's96', 's98', 's99', 's100'
sBLK = 's97'
sOREC, sYREC = 's22', 's23'
NSGPR = 101
NEVER = -(1 << 30)
vBK, vBV, vKA, vVA, vKV = 'v1', 'v2', 'v4', 'v5', 'v9'
WO0 = 48

def home(idx):
    return ('a', idx * 32) if idx < 8 else ('v', 64 + (idx - 8) * 32)
def hreg(idx, off, n):
    f, b = home(idx)
    return '%s[%d:%d]' % (f, b + off, b + off + n - 1)
def vr(i, n): return 'v[%d:%d]' % (i, i + n - 1)
def vl(lo, hi): return ['v%d' % i for i in range(lo, hi)]

def gen(cfg):
    a = Asm()
    a.raw(HEADER.rstrip())
    a.raw('; @launch grid=(256,1,1) block=(256,1,1) lds=%d' % LDS_BYTES)
    a.raw('.amdgcn_target "amdgcn-amd-amdhsa--gfx950"')
    a.raw('.text')
    a.raw('.globl %s_kernel' % NAME)
    a.raw('.p2align 8')
    a.raw('.type %s_kernel,@function' % NAME)
    a.label('%s_kernel' % NAME)
    DPP = 'row_mask:0xf bank_mask:0xf'
    NL = a.newlabel

    stubs = []
    def service():
        L = NL('L_ns')
        a('s_getreg_b32 %s, hwreg(HW_REG_IB_STS)' % sT[0])
        a('s_and_b32 %s, %s, 15' % (sT[1], sT[0]))
        a('s_bfe_u32 %s, %s, 0x20016' % (sT[0], sT[0]))
        a('s_lshl4_add_u32 %s, %s, %s' % (sT[1], sT[0], sT[1]))
        a('s_sub_i32 %s, %s, %s' % (sDONE, sOPS, sT[1]))
        a('s_cmp_gt_i32 %s, %s' % (sT[1], sVW))
        a.nofence('s_cbranch_scc1 %s' % L)
        a.nofence('s_swappc_b64 %s, %s' % (RET_S, sNEXT))
        a.label(L)
    def quick():
        if not cfg.quick: return
        Ls, Lr = NL('L_qs'), NL('L_qr')
        a('s_getreg_b32 %s, hwreg(HW_REG_IB_STS, 0, 4)' % sT[0])
        a('s_cmp_le_i32 %s, %s' % (sT[0], sVW))
        a.nofence('s_cbranch_scc1 %s' % Ls)
        a.label(Lr)
        stubs.append((Ls, Lr))
    def flush_stubs():
        for Ls, Lr in stubs[:]:
            a.label(Ls)
            service()
            a.nofence('s_branch %s' % Lr)
        del stubs[:]
    def set_lim(text):
        a(text)
        a('s_cmp_eq_u32 %s, 1' % sBLK)
        a('s_cselect_b32 %s, 63, %s' % (sVW, sVW))
    def rkick():
        L = NL('L_rk')
        a('s_cmp_eq_u32 %s, 0' % sKN)
        a.nofence('s_cbranch_scc1 %s' % L)
        a.nofence('s_call_b64 %s, L_kick' % RET_K)
        a.label(L)

    def stamp(ev, b=sB):
        if not cfg.stamps: return
        a('s_memrealtime %s' % sSTAMP)
        a('s_lshl_b32 %s, %s, 7' % (sT[0], b))
        a('s_add_u32 %s, %s, %s' % (sT[0], sT[0], sSTO))
        a('s_waitcnt lgkmcnt(0)')
        a('v_mov_b32 v3, s92')
        a('s_mov_b64 exec, 1')
        a('buffer_store_dword v3, v0, %s, %s offen offset:%d' % (SRD_W, sT[0], 4 * ev))
        a('s_mov_b64 exec, -1')

    def tmo_check():
        a('s_sub_u32 %s, %s, 1' % (sTMO, sTMO))
        a('s_cbranch_scc1 L_exit')
    def record(n):
        a('s_add_u32 %s, %s, %s' % (sOPS, sOPS, n))
        a('s_add_u32 %s, %s, %s' % (sVW, sVW, n))
    def issued(n):
        if n: record(n)
        a('s_mov_b32 %s, %s' % (sSEQ, sOPS))
    def wait_seq():
        Lw = NL('L_w')
        a.label(Lw)
        service()
        tmo_check()
        a('s_cmp_ge_i32 %s, %s' % (sDONE, sSEQ))
        a('s_cbranch_scc0 %s' % Lw)
    def wait_loads(n):
        issued(n)
        wait_seq()
    def tagcheck(regs, tag, tmp, mask=15):
        a('v_xor_b32 %s, %s, %s' % (tmp, tag, regs[0]))
        for r in regs[1:]:
            a('v_bitop3_b32 %s, %s, %s, %s bitop3:0xf6' % (tmp, tmp, r, tag))
        a('v_and_b32 %s, %d, %s' % (tmp, mask, tmp))
        a('v_cmp_ne_u32 vcc, 0, %s' % tmp)
    def poll(issue, n, regs, tag, tmp):
        Lr = NL('L_pr')
        a.label(Lr)
        issue()
        wait_loads(n)
        tagcheck(regs, tag, tmp)
        a('s_cbranch_vccnz %s' % Lr)
    def lstore(*texts):
        Lg, Le = NL('L_g'), NL('L_e')
        a('s_cmp_eq_u32 %s, 0' % sLOC)
        a('s_cbranch_scc1 %s' % Lg)
        for t in texts: a(t)
        a('s_branch %s' % Le)
        a.label(Lg)
        for t in texts: a(t + ' sc1' if t.startswith('buffer') else t)
        a.label(Le)
    def lds_wait(idx, want, t):
        Lw, Ld = NL('L_lw'), NL('L_ld')
        a('v_mov_b32 %s, %d' % (t[0], L_CNT + 4 * idx))
        a.label(Lw)
        a('ds_read_b32 %s, %s' % (t[1], t[0]))
        a('s_waitcnt lgkmcnt(0)')
        a('v_readfirstlane_b32 %s, %s' % (sU[12], t[1]))
        a('s_cmp_ge_u32 %s, %s' % (sU[12], want))
        a('s_cbranch_scc1 %s' % Ld)
        service()
        tmo_check()
        a('s_branch %s' % Lw)
        a.label(Ld)
    def lds_flag(idx, val, t, op='ds_write_b32'):
        a('v_mov_b32 %s, %d' % (t[0], L_CNT + 4 * idx))
        a('v_mov_b32 %s, %s' % (t[1], val))
        a('s_mov_b64 exec, 1')
        a('%s %s, %s' % (op, t[0], t[1]))
        a('s_mov_b64 exec, -1')
    def last_arriver(idx, Lskip, t):
        a('v_mov_b32 %s, %d' % (t[0], L_CNT + 4 * idx))
        a('v_mov_b32 %s, 1' % t[1])
        a('s_mov_b64 exec, 1')
        a('ds_add_rtn_u32 %s, %s, %s' % (t[1], t[0], t[1]))
        a('s_mov_b64 exec, -1')
        a('s_waitcnt lgkmcnt(0)')
        a('v_readfirstlane_b32 %s, %s' % (sU[12], t[1]))
        a('s_and_b32 %s, %s, 3' % (sU[12], sU[12]))
        a('s_cmp_eq_u32 %s, 3' % sU[12])
        a('s_cbranch_scc0 %s' % Lskip)
    def only_wave(w, Lskip):
        a('s_cmp_lg_u32 %s, %d' % (sW, w))
        a('s_cbranch_scc1 %s' % Lskip)

    STEPS = ['quad_perm:[1,0,3,2] ' + DPP, 'quad_perm:[2,3,0,1] ' + DPP, 'row_half_mirror ' + DPP, 'row_mirror ' + DPP,
             'row_bcast:15 row_mask:0xa bank_mask:0xf', 'row_bcast:31 row_mask:0xc bank_mask:0xf']
    ROR = ('row_ror:4 ' + DPP, 'row_ror:8 ' + DPP)
    def wave_sum(regs, nsteps=6):
        for m in STEPS[:nsteps]:
            for r in regs: a('v_add_f32_dpp %s, %s, %s %s' % (r, r, r, m))
    def xrow(op, regs, temps, swaps=('v_permlane16_swap_b32', 'v_permlane32_swap_b32')):
        for sw in swaps:
            for r, t in zip(regs, temps): a('v_mov_b32 %s, %s' % (t, r))
            for r, t in zip(regs, temps): a('%s %s, %s' % (sw, r, t))
            for r, t in zip(regs, temps): a('%s %s, %s, %s' % (op, r, r, t))
    def bf16r(regs, tmp):
        for i in range(0, len(regs) - 1, 2):
            x, y = regs[i], regs[i + 1]
            a('v_cvt_pk_bf16_f32 %s, %s, %s' % (y, x, y))
            a('v_lshlrev_b32 %s, 16, %s' % (x, y))
            a('v_and_b32 %s, 0xffff0000, %s' % (y, y))
        if len(regs) & 1:
            x = regs[-1]
            a('v_cvt_pk_bf16_f32 %s, %s, %s' % (x, x, x))
            a('v_lshlrev_b32 %s, 16, %s' % (x, x))
    def ln_finish(mean, var, mb, r):
        a('v_cvt_pk_bf16_f32 %s, %s, %s' % (r, mean, var))
        a('v_lshlrev_b32 %s, 16, %s' % (mb, r))
        a('v_and_b32 %s, 0xffff0000, %s' % (r, r))
        a('v_add_f32 %s, %s, %s' % (r, f32(1e-5), r))
        bf16r([r], None)
        a('v_sqrt_f32 %s, %s' % (r, r))
        bf16r([r], None)
        a('v_rcp_f32 %s, %s' % (r, r))
    def ln_vec(src, dst, n, mb, final_round=True):
        for c in range(0, n, 2): a('v_pk_add_f32 %s, %s, %s op_sel_hi:[1,0] neg_lo:[0,1] neg_hi:[0,1]' % (vr(dst + c, 2), vr(src + c, 2), vr(mb, 2)))
        bf16r(vl(dst, dst + n), None)
        for c in range(0, n, 2): a('v_pk_mul_f32 %s, %s, %s op_sel:[0,1] op_sel_hi:[1,1]' % (vr(dst + c, 2), vr(dst + c, 2), vr(mb, 2)))
        if final_round: bf16r(vl(dst, dst + n), None)
    def stats8(x0, d0, padded):
        a('v_readlane_b32 %s, v%d, 0' % (sU[3], x0))
        if padded:
            a('s_mov_b32 vcc_lo, 0x55555555')
            a('s_mov_b32 vcc_hi, 0x55555555')
        else:
            a('v_cmp_gt_u32 vcc, 56, v0')
        for c in range(8): a('v_subrev_f32 v%d, %s, v%d' % (d0 + c, sU[3], x0 + c))
        if padded:
            a('v_cndmask_b32 v%d, 0, v%d, vcc' % (d0 + 6, d0 + 6))
            a('v_cndmask_b32 v%d, 0, v%d, vcc' % (d0 + 7, d0 + 7))
        a('v_pk_mul_f32 v[28:29], %s, %s' % (vr(d0, 2), vr(d0, 2)))
        a('v_pk_add_f32 v[26:27], %s, %s' % (vr(d0, 2), vr(d0 + 2, 2)))
        for c in (2, 4, 6): a('v_pk_fma_f32 v[28:29], %s, %s, v[28:29]' % (vr(d0 + c, 2), vr(d0 + c, 2)))
        a('v_pk_add_f32 %s, %s, %s' % (vr(d0 + 4, 2), vr(d0 + 4, 2), vr(d0 + 6, 2)))
        a('v_pk_add_f32 v[26:27], v[26:27], %s' % vr(d0 + 4, 2))
        a('v_add_f32 v26, v26, v27')
        a('v_add_f32 v27, v28, v29')
        if not padded:
            a('v_cndmask_b32 v26, 0, v26, vcc')
            a('v_cndmask_b32 v27, 0, v27, vcc')
        wave_sum(['v26', 'v27'])
        a('v_readlane_b32 %s, v26, 63' % sU[1])
        a('v_readlane_b32 %s, v27, 63' % sU[2])
        a('v_mov_b32 v28, %s' % f32(1.0 / 448))
        a('v_mul_f32 v26, %s, v28' % sU[1])
        a('v_mul_f32 v27, %s, v28' % sU[2])
        a('v_fma_f32 v27, -v26, v26, v27')
        a('v_add_f32 v26, %s, v26' % sU[3])
        a('v_max_f32 v27, 0, v27')

    K0 = -2.0 * 0.7978845608028654 * 1.4426950408889634
    def gelu_consts(kv):
        a('s_mov_b32 s82, %s' % f32(K0 * 0.044715))
        a('s_mov_b32 s83, s82')
        a('v_mov_b32 v%d, %s' % (kv, f32(K0)))
        a('v_mov_b32 v%d, v%d' % (kv + 1, kv))
    def gelu_pairs(hreg2, W1, B1, W2, U, Z, acc, kv, first):
        n = len(W1)
        def rnd():
            for i in range(n): a('v_cvt_pk_bf16_f32 v%d, v%d, v%d' % (U[i] + 1, U[i], U[i] + 1))
            for i in range(n): a('v_lshlrev_b32 v%d, 16, v%d' % (U[i], U[i] + 1))
            for i in range(n): a('v_and_b32 v%d, 0xffff0000, v%d' % (U[i] + 1, U[i] + 1))
        for i in range(n): a('v_pk_mul_f32 %s, %s, %s op_sel_hi:[0,1]' % (vr(U[i], 2), hreg2, vr(W1[i], 2)))
        rnd()
        for i in range(n): a('v_pk_add_f32 %s, %s, %s' % (vr(U[i], 2), vr(U[i], 2), vr(B1[i], 2)))
        rnd()
        quick()
        for i in range(n): a('v_pk_mul_f32 %s, %s, %s' % (vr(Z[i], 2), vr(U[i], 2), vr(U[i], 2)))
        for i in range(n): a('v_pk_fma_f32 %s, %s, s[82:83], %s' % (vr(Z[i], 2), vr(Z[i], 2), vr(kv, 2)))
        for i in range(n): a('v_pk_mul_f32 %s, %s, %s' % (vr(Z[i], 2), vr(Z[i], 2), vr(U[i], 2)))
        for i in range(n):
            for e in range(2): a('v_exp_f32 v%d, v%d' % (Z[i] + e, Z[i] + e))
        for i in range(n): a('v_pk_add_f32 %s, %s, 1.0 op_sel_hi:[1,0]' % (vr(Z[i], 2), vr(Z[i], 2)))
        for i in range(n):
            for e in range(2): a('v_rcp_f32 v%d, v%d' % (Z[i] + e, Z[i] + e))
        for i in range(n): a('v_pk_mul_f32 %s, %s, %s' % (vr(U[i], 2), vr(U[i], 2), vr(Z[i], 2)))
        for i in range(n): a('v_cvt_pk_bf16_f32 v%d, v%d, v%d' % (U[i], U[i], U[i] + 1))
        for i in range(n):
            a('v_dot2_f32_bf16 v%d, v%d, v%d, %s' % (acc[i & 1], U[i], W2[i], '0' if (first and i < 2) else 'v%d' % acc[i & 1]))
        quick()
    def mix_finish(acc, dst):
        if len(acc) > 1: a('v_add_f32 v%d, v%d, v%d' % (acc[0], acc[0], acc[1]))
        wave_sum(['v%d' % acc[0]])
        bf16r(['v%d' % acc[0]], None)
        a('v_add_f32 v%d, %s, v%d' % (acc[0], sB2V, acc[0]))
        bf16r(['v%d' % acc[0]], None)
        a('v_readlane_b32 %s, v%d, 63' % (dst, acc[0]))

    def slot_off(dst, base, b=sB):
        a('s_lshl_b32 %s, %s, 14' % (dst, b))
        a('s_add_u32 %s, %s, 0x%x' % (dst, dst, base))
    def set_off(dst, base, stride, layer):
        a('s_and_b32 %s, %s, 1' % (dst, sB))
        a('s_mul_i32 %s, %s, 0x%x' % (dst, dst, stride))
        a('s_add_u32 %s, %s, 0x%x' % (dst, dst, base + 2 * layer * stride))
    def tag_of(dst, base):
        a('s_and_b32 %s, %s, 3' % (dst, sB))
        a('s_add_u32 %s, %s, %d' % (dst, dst, base))
    def arm(stride, lds, n, first_delay=0):
        a('s_mov_b32 %s, %d' % (sKS, stride))
        a('s_mov_b32 %s, %d' % (sKL, lds))
        a('s_mov_b32 %s, %d' % (sKN, n))
        a('s_mov_b32 %s, %d' % (sKC, first_delay))
        a('v_lshrrev_b32 %s, 2, v0' % vKV)
        a('v_and_b32 v3, 3, v0')
        a('v_mul_u32_u24 %s, %d, %s' % (vKV, stride, vKV))
        a('v_lshl_add_u32 %s, v3, 4, %s' % (vKV, vKV))
    def by_parity(stem):
        L1, L2 = NL('L_a'), NL('L_a')
        a('s_bitcmp1_b32 %s, 0' % sB)
        a('s_cbranch_scc1 %s' % L1)
        a('s_call_b64 %s, %s0' % (RET_A, stem))
        a('s_branch %s' % L2)
        a.label(L1)
        a('s_call_b64 %s, %s1' % (RET_A, stem))
        a.label(L2)
    def stash_addr(reg, tmp):
        a('v_lshrrev_b32 %s, 4, v0' % reg)
        a('v_and_b32 %s, 1, v0' % tmp)
        a('v_lshl_add_u32 %s, %s, 1, %s' % (reg, reg, tmp))
        a('s_lshl_b32 %s, %s, 11' % (sU[0], sW))
        a('s_add_u32 %s, %s, %d' % (sU[0], sU[0], L_COMB))
        a('v_lshl_add_u32 %s, %s, 5, %s' % (reg, reg, sU[0]))
    def col_in_wave(dst, tmp):
        a('v_bfe_u32 %s, v0, 2, 3' % dst)
        a('v_and_b32 %s, 3, v0' % tmp)
        a('v_lshlrev_b32 %s, 2, %s' % (tmp, tmp))
        a('v_mad_u32_u24 %s, %s, 14, %s' % (dst, dst, tmp))

    a('s_cmp_ge_u32 s2, 256')
    a('s_cbranch_scc1 L_exit')
    a('s_load_dwordx16 s[16:31], s[0:1], 0')
    a('s_load_dwordx8 s[32:39], s[0:1], 64')
    a('s_load_dwordx2 s[40:41], s[0:1], 96')
    a('v_mov_b32 v47, v0')
    a('v_lshrrev_b32 v1, 6, v0')
    a('v_and_b32 v0, 63, v0')
    a('v_readfirstlane_b32 %s, v1' % sW)
    a('s_mov_b32 %s, s2' % sWG)
    a('s_and_b32 %s, s2, 7' % sH)
    a('s_lshr_b32 %s, s2, 3' % sSP)
    a('v_lshrrev_b32 v6, 5, v0')
    a('v_and_b32 v7, 31, v0')
    a('v_xor_b32 v8, v7, v6')
    a('v_lshlrev_b32 v8, 4, v8')
    a('v_lshl_add_u32 %s, v6, 9, v8' % vBK)
    a('s_lshl_b32 %s, %s, 22' % (sTB, sH))
    a('s_lshl_b32 %s, %s, 17' % (sT[0], sSP))
    a('s_add_u32 %s, %s, %s' % (sTB, sTB, sT[0]))
    a('s_lshl_b32 %s, %s, 10' % (sT[0], sW))
    a('s_add_u32 %s, %s, %s' % (sTB, sTB, sT[0]))
    a('s_lshl_b32 %s, %s, 14' % (sRING, sW))
    a('s_add_u32 %s, %s, %d' % (sRING, sRING, L_RING))
    for r, val in ((sMOV, 0), (sLIM, 8), (sOPS, 0), (sDONE, 0), (sBLK, 0)):
        a('s_mov_b32 %s, %d' % (r, val))
    a('s_mov_b32 s10, 0x10000000')
    a('s_mov_b32 s11, 0x00020000')
    a('s_mov_b32 s6, 0x10000000')
    a('s_mov_b32 s7, 0x00020000')
    a('s_mov_b32 s14, 0x%x' % WS_BYTES)
    a('s_mov_b32 s15, 0x00020000')
    a('v_lshlrev_b32 v8, 2, v6')
    a('v_xor_b32 v8, v7, v8')
    a('v_lshlrev_b32 v8, 4, v8')
    a('v_lshl_add_u32 %s, v6, 9, v8' % vBV)
    a('v_and_b32 v6, 15, v0')
    a('v_lshrrev_b32 v7, 4, v0')
    a('v_xor_b32 v8, v6, v7')
    a('v_lshlrev_b32 v8, 4, v8')
    a('v_lshl_add_u32 %s, v6, 9, v8' % vKA)
    a('v_add_u32 %s, %s, %s' % (vKA, sRING, vKA))
    a('v_lshrrev_b32 v8, 2, v6')
    a('v_bfe_u32 v9, v0, 1, 1')
    a('v_lshl_add_u32 v9, v7, 1, v9')
    a('v_lshlrev_b32 v7, 2, v8')
    a('v_xor_b32 v9, v9, v7')
    a('v_lshlrev_b32 v9, 4, v9')
    a('v_lshl_add_u32 v9, v8, 9, v9')
    a('v_and_b32 v7, 1, v0')
    a('v_lshl_add_u32 %s, v7, 3, v9' % vVA)
    a('v_add_u32 %s, %s, %s' % (vVA, sRING, vVA))
    a('s_waitcnt lgkmcnt(0)')
    a('s_mov_b64 s[4:5], %s' % S_K)
    a('s_mov_b64 s[12:13], %s' % S_WS)
    a('s_mov_b64 s[8:9], %s' % S_V)
    a('s_call_b64 %s, L_st_start' % RET_S)
    a('v_mov_b32 v6, s0')
    a('v_mov_b32 v7, s1')
    a('v_readfirstlane_b32 s0, v6')
    a('v_readfirstlane_b32 s1, v7')
    for r, val in ((sLOC, 0), (sTMO, cfg.tmo), (sNC, 0), (sXN, 0), (sC0, 0), (sC1, 0), (sAB, 0), (sAS, 0), (sRQ, 0), (sTG, 0),
                   (sKN, 0), (sB, 0)):
        a('s_mov_b32 %s, %d' % (r, val))
    a('s_mov_b32 %s, %s' % (sC, f32(1.4426950408889634 / 16)))
    a('s_lshl_b32 %s, %s, 11' % (sU[4], sH))
    a('s_lshl_b32 %s, %s, 6' % (sU[0], sSP))
    a('s_add_u32 %s, %s, %s' % (sU[4], sU[4], sU[0]))
    a('v_mov_b32 v12, 0\nv_mov_b32 v13, 0\nv_mov_b32 v14, 0\nv_mov_b32 v15, 0')
    a('v_lshlrev_b32 v11, 4, v0')
    a('v_lshrrev_b32 v16, 2, v0')
    a('v_and_b32 v17, 48, v11')
    a('v_lshl_add_u32 v10, v16, 14, v17')
    a('s_and_b32 %s, %s, 1' % (sU[0], sW))
    a('s_lshl_b32 %s, %s, 18' % (sU[0], sU[0]))
    a('s_add_u32 %s, %s, %s' % (sU[0], sU[0], sU[4]))
    a('s_add_u32 %s, %s, 0x%x' % (sU[0], sU[0], QB_OFF))
    a('buffer_store_dwordx4 v[12:15], v10, %s, %s offen sc1' % (SRD_W, sU[0]))
    a('s_lshl2_add_u32 %s, %s, %s' % (sU[10], sWG, sW))
    a('s_mul_i32 %s, %s, 20' % (sU[5], sU[10]))
    a('s_add_u32 %s, %s, 0x%x' % (sU[5], sU[5], TB_OFF))
    a('v_lshlrev_b32 v10, 2, v0')
    a('s_mov_b64 exec, 31')
    a('buffer_store_dword v12, v10, %s, %s offen sc1' % (SRD_W, sU[5]))
    a('s_mov_b64 exec, -1')
    a('s_mul_i32 %s, %s, 2560' % (sU[0], sWG))
    a('s_mul_i32 %s, %s, 0x%x' % (sU[1], sW, OB_SET))
    a('s_add_u32 %s, %s, %s' % (sU[0], sU[0], sU[1]))
    for off in (0, 1024, 1536):
        a('buffer_store_dwordx4 v[12:15], v11, %s, %s offen offset:%d sc1' % (SRD_W, sU[0], off))
    a('s_lshl_b32 %s, %s, 11' % (sU[0], sWG))
    a('s_lshl_b32 %s, %s, 19' % (sU[1], sW))
    a('s_add_u32 %s, %s, %s' % (sU[0], sU[0], sU[1]))
    a('s_add_u32 %s, %s, 0x%x' % (sU[0], sU[0], YL_OFF))
    for off in (0, 1024):
        a('buffer_store_dwordx4 v[12:15], v11, %s, %s offen offset:%d sc1' % (SRD_W, sU[0], off))
    a('v_lshl_add_u32 v10, v16, 15, v17')
    a('s_lshl_b32 %s, %s, 10' % (sU[0], sSP))
    a('s_lshl_b32 %s, %s, 7' % (sU[2], sH))
    a('s_add_u32 %s, %s, %s' % (sU[0], sU[0], sU[2]))
    a('s_add_u32 %s, %s, %s' % (sU[0], sU[0], sU[1]))
    a('s_add_u32 %s, %s, 0x%x' % (sU[0], sU[0], XG_OFF))
    a('buffer_store_dwordx4 v[12:15], v10, %s, %s offen sc1' % (SRD_W, sU[0]))
    issued(0)
    a('v_min_u32 v10, 55, v0')
    a('s_mul_i32 %s, %s, 1792' % (sU[0], sW))
    a('v_lshl_add_u32 v10, v10, 4, %s' % sU[0])
    a('global_load_dwordx4 v[232:235], v10, %s' % S_X)
    a('global_load_dwordx4 v[236:239], v10, %s offset:896' % S_X)
    a('v_lshlrev_b32 v11, 4, v47')
    a('ds_write_b128 v11, v[12:15] offset:%d' % L_CNT)
    a('s_lshl_b32 %s, %s, 9' % (sU[0], sH))
    a('s_lshl_b32 %s, %s, 4' % (sU[1], sSP))
    a('s_add_u32 %s, %s, %s' % (sU[2], sU[0], sU[1]))
    a('s_mul_i32 %s, %s, %d' % (sU[0], sW, 112 * 8192))
    a('s_lshl_b32 %s, %s, 1' % (sU[1], sU[2]))
    a('s_add_u32 %s, %s, %s' % (sU[0], sU[0], sU[1]))
    a('v_lshrrev_b32 v10, 1, v0')
    a('v_lshlrev_b32 v10, 13, v10')
    a('v_and_b32 v11, 1, v0')
    a('v_lshl_add_u32 v10, v11, 4, v10')
    a('v_add_u32 v10, %s, v10' % sU[0])
    for i in range(4):
        if i == 3: a('s_mov_b32 exec_hi, 0')
        a('global_load_dwordx4 v[%d:%d], v10, %s' % (32 + 4 * i, 35 + 4 * i, S_WQ))
        if i < 3: a('v_add_u32 v10, %d, v10' % (32 * 8192))
    a('s_mov_b64 exec, -1')
    record(6)
    a('s_mov_b32 %s, %s' % (sU[9], sOPS))
    a('s_mov_b32 %s, %s' % (sYREC, sU[4]))
    a('s_mul_i32 %s, %s, 2560' % (sOREC, sH))
    a('s_mul_i32 %s, %s, 80' % (sU[0], sSP))
    a('s_add_u32 %s, %s, %s' % (sOREC, sOREC, sU[0]))
    a('s_waitcnt lgkmcnt(0)')
    a('s_barrier')
    service()
    a('v_lshlrev_b32 v10, 3, v0')
    for k, ptr in enumerate((S_W1, S_B1, S_W2)):
        for i in range(7):
            a('global_load_dwordx2 %s, v10, %s offset:%d' % (vr(64 + 14 * k + 2 * i, 2), ptr, 512 * i))
    a('v_mov_b32 v10, 0')
    a('global_load_ushort v106, v10, %s' % S_B2)
    a('v_bfe_u32 v10, v0, 2, 3')
    a('v_mul_u32_u24 v10, 896, v10')
    a('v_and_b32 v11, 3, v0')
    a('v_lshl_add_u32 v10, v11, 3, v10')
    a('s_mul_i32 %s, %s, 28' % (sU[0], sSP))
    a('v_add_u32 v10, %s, v10' % sU[0])
    a('v_add_u32 v11, 4, v10')
    a('v_min_u32 v11, %d, v11' % (8 * 896 - 4))
    a('global_load_dword v170, v10, %s' % S_X)
    a('global_load_dword v171, v11, %s' % S_X)
    record(24)
    service()
    a('s_mul_i32 %s, %s, 896' % (sU[0], sU[2]))
    a('s_mul_i32 %s, %s, 224' % (sU[1], sW))
    a('s_add_u32 %s, %s, %s' % (sU[0], sU[0], sU[1]))
    a('v_and_b32 v10, 7, v0')
    a('v_min_u32 v10, 6, v10')
    a('v_lshlrev_b32 v10, 2, v10')
    a('v_lshrrev_b32 v11, 3, v0')
    a('v_mad_u32_u24 v10, v11, 28, v10')
    a('v_add_u32 v10, %s, v10' % sU[0])
    for r in range(16):
        if r and r % 4 == 0: a('v_add_u32 v10, %d, v10' % (4 * 896))
        a('global_load_dword v%d, v10, %s offset:%d nt' % (240 + r, S_WO, (r % 4) * 896))
    record(16)
    a('s_getreg_b32 %s, hwreg(HW_REG_XCC_ID)' % sXCC)
    a('s_and_b32 %s, %s, 7' % (sXCC, sXCC))
    a('s_mul_i32 %s, %s, 1986' % (sU[0], sWG))
    a('s_lshr_b32 %s, %s, 16' % (sU[0], sU[0]))
    a('s_mul_i32 %s, %s, 33' % (sU[1], sU[0]))
    a('s_cmp_eq_u32 %s, %s' % (sU[1], sWG))
    a('s_cselect_b32 %s, %s, 99' % (sFIN, sU[0]))
    a('s_lshl_b32 %s, %s, 12' % (sWQS, sU[10]))
    a('s_add_u32 %s, %s, 0x%x' % (sWQS, sWQS, WQS_OFF))
    if cfg.stamps:
        a('s_lshl_b32 %s, %s, 11' % (sSTO, sU[10]))
        a('s_add_u32 %s, %s, 0x%x' % (sSTO, sSTO, DBG_OFF))
    stamp(0)
    wait_seq()
    Lsk = NL('L_sk')
    a('v_mov_b32 v108, 0\nv_mov_b32 v109, 0')
    last_arriver(C_CLR, Lsk, ['v10', 'v11'])
    a('s_mul_i32 %s, %s, 6' % (sU[0], sXCC))
    a('s_lshl_b64 s[78:79], 1, %s' % sU[0])
    a('s_or_b32 s79, s79, 0x10000')
    a('v_mov_b32 v110, s78\nv_mov_b32 v111, s79')
    a('s_lshl_b32 %s, %s, 3' % (sU[0], sH))
    a('v_mov_b32 v10, %s' % sU[0])
    a('s_mov_b64 exec, 1')
    a('global_atomic_add_x2 v[108:109], v10, v[110:111], %s sc0 sc1' % S_DBG)
    a('s_mov_b64 exec, -1')
    record(1)
    a.label(Lsk)
    a('s_mov_b32 %s, %s' % (sU[11], sOPS))
    a('s_mov_b32 %s, %s' % (sSEQ, sU[9]))
    wait_seq()
    a('s_mul_i32 %s, %s, 3584' % (sU[0], sW))
    a('s_add_u32 %s, %s, %d' % (sU[0], sU[0], L_WQ))
    a('v_lshl_add_u32 v10, v0, 4, %s' % sU[0])
    for i in range(4):
        if i == 3: a('s_mov_b32 exec_hi, 0')
        a('ds_write_b128 v10, v[%d:%d] offset:%d' % (32 + 4 * i, 35 + 4 * i, 1024 * i))
    a('s_mov_b64 exec, -1')
    stamp(1)
    a('v_lshrrev_b32 v10, 5, v0')
    a('v_mul_u32_u24 v10, 14, v10')
    a('v_bfe_u32 v11, v0, 4, 1')
    a('v_lshl_add_u32 v10, v11, 3, v10')
    a('v_bfe_u32 v11, v0, 2, 2')
    a('v_add_u32 v10, v10, v11')
    a('v_and_b32 v11, 3, v0')
    a('v_lshlrev_b32 v11, 3, v11')
    a('v_lshl_add_u32 v10, v10, 5, v11')
    a('v_add_u32 v10, %s, v10' % sU[0])
    for k in range(4):
        a('ds_read_b64_tr_b16 %s, v10 offset:%d' % (vr(30 + 4 * k, 2), 896 * k))
        a('ds_read_b64_tr_b16 %s, v10 offset:%d' % (vr(32 + 4 * k, 2), 896 * k + 128))
    a('s_mov_b32 vcc_lo, 0x0000ffff')
    a('s_mov_b32 vcc_hi, 0x0000ffff')
    a('v_lshlrev_b32 v46, 4, v0')
    a('s_waitcnt lgkmcnt(0)')
    for k in range(4): a('v_cndmask_b32 v%d, 0, v%d, vcc' % (33 + 4 * k, 33 + 4 * k))
    for k in range(4): a('buffer_store_dwordx4 %s, v46, %s, %s offen offset:%d' % (vr(30 + 4 * k, 4), SRD_W, sWQS, 1024 * k))
    for rr in range(2):
        for i in range(4):
            a('v_lshlrev_b32 v%d, 16, v%d' % (10 + 2 * i, 232 + 4 * rr + i))
            a('v_and_b32 v%d, 0xffff0000, v%d' % (11 + 2 * i, 232 + 4 * rr + i))
        stats8(10, 18, False)
        ln_finish('v26', 'v27', 'v28', 'v29')
        quick()
        ln_vec(10, 10, 8, 28, final_round=False)
        for i in range(4): a('v_cvt_pk_bf16_f32 v%d, v%d, v%d' % (18 + i, 10 + 2 * i, 11 + 2 * i))
        a('s_mul_i32 %s, %s, 2080' % (sU[0], sW))
        a('v_lshl_add_u32 v23, v0, 4, %s' % sU[0])
        a('ds_write_b128 v23, v[18:21] offset:%d' % (1040 * rr))
        service()
    Lq = NL('L_q1')
    last_arriver(C_WQ, Lq, ['v10', 'v11'])
    a('v_lshrrev_b32 v22, 4, v0')
    a('v_bfe_u32 v23, v0, 2, 2')
    a('v_lshl_add_u32 v22, v22, 3, v23')
    a('v_lshlrev_b32 v22, 5, v22')
    a('v_and_b32 v23, 3, v0')
    a('v_lshl_add_u32 v22, v23, 3, v22')
    a('v_add_u32 v22, %d, v22' % L_WQ)
    a('v_and_b32 v23, 7, v0')
    a('v_mul_u32_u24 v23, 1040, v23')
    a('v_and_b32 v21, 48, v0')
    a('v_add_u32 v23, v23, v21')
    for half in range(2):
        for k in range(7):
            st = 7 * half + k
            a('ds_read_b64_tr_b16 %s, v22 offset:%d' % (vr(176 + 8 * k, 2), 1024 * st))
            a('ds_read_b64_tr_b16 %s, v22 offset:%d' % (vr(178 + 8 * k, 2), 1024 * st + 128))
            a('ds_read_b128 %s, v23 offset:%d' % (vr(180 + 8 * k, 4), 64 * st))
            if k == 3: a('s_waitcnt lgkmcnt(0)')
        a('s_waitcnt lgkmcnt(0)')
        for k in range(7):
            a('v_mfma_f32_16x16x32_bf16 v[172:175], %s, %s, %s' % (vr(180 + 8 * k, 4), vr(176 + 8 * k, 4), '0' if (half == 0 and k == 0) else 'v[172:175]'))
    a('v_mov_b32 v12, 0\nv_mov_b32 v13, 0\nv_mov_b32 v14, 0\nv_mov_b32 v15, 0')
    a('v_lshlrev_b32 v11, 4, v0')
    a('v_add_u32 v11, %d, v11' % L_INB)
    assert LDS_BYTES - L_INB == 7168
    for i in range(7): a('ds_write_b128 v11, v[12:15] offset:%d' % (1024 * i))
    lds_flag(F_RDY, '1', ['v10', 'v11'])
    a('s_add_u32 %s, %s, 0x%x' % (sU[0], sYREC, QB_OFF))
    a('v_lshrrev_b32 v11, 4, v0')
    a('v_and_b32 v10, 15, v0')
    a('v_lshlrev_b32 v10, 2, v10')
    a('v_lshl_add_u32 v10, v11, 16, v10')
    a('v_lshlrev_b32 v11, 2, v11')
    a('s_mov_b32 exec_hi, 0')
    for r in range(4):
        a('v_add_u32 v12, %d, v11' % (r + 1))
        a('v_cvt_pk_bf16_f32 v13, v%d, v%d' % (172 + r, 172 + r))
        a('v_lshl_or_b32 v%d, v13, 16, v12' % (14 + r))
        a('buffer_store_dword v%d, v10, %s, %s offen sc1' % (14 + r, SRD_W, sU[0]))
        if r < 3: a('s_add_u32 %s, %s, 16384' % (sU[0], sU[0]))
    a('s_mov_b64 exec, -1')
    a.label(Lq)
    a('s_mov_b32 %s, %s' % (sSEQ, sU[11]))
    wait_seq()
    Lsk = NL('L_sk')
    a('v_readfirstlane_b32 s78, v108')
    a('v_readfirstlane_b32 s79, v109')
    a('s_lshr_b32 %s, s79, 16' % sU[0])
    a('s_cmp_eq_u32 %s, 31' % sU[0])
    a('s_cbranch_scc0 %s' % Lsk)
    a('s_mul_i32 %s, %s, 6' % (sU[0], sXCC))
    a('s_lshr_b64 s[78:79], s[78:79], %s' % sU[0])
    a('s_and_b32 %s, s78, 63' % sU[0])
    a('s_cmp_eq_u32 %s, 31' % sU[0])
    a('s_cselect_b32 %s, 3, 2' % sU[0])
    a('v_mov_b32 v11, %s' % sU[0])
    a('s_lshl_b32 %s, %s, 2' % (sU[0], sH))
    a('v_mov_b32 v10, %s' % sU[0])
    a('s_mov_b64 exec, 1')
    a('global_store_dword v10, v11, %s offset:128 sc1' % S_DBG)
    a('s_mov_b64 exec, -1')
    a.label(Lsk)
    stamp(29)
    a('v_lshlrev_b32 v11, 16, v106')
    a('v_readfirstlane_b32 %s, v11' % sB2V)
    a('v_lshlrev_b32 v10, 3, v0')
    a('s_mov_b32 exec_hi, 0')
    a('ds_write_b64 v10, v[170:171] offset:%d' % L_XR)
    a('s_mov_b64 exec, -1')
    a('s_mov_b32 %s, 0x05040100' % sU[0])
    a('s_mov_b32 %s, 0x07060302' % sU[1])
    for aa in range(4):
        for cgi in range(2):
            for hh in range(2):
                r0 = 240 + 4 * aa + 2 * hh
                a('v_perm_b32 v%d, v%d, v%d, %s' % (WO0 + aa * 4 + cgi * 2 + hh, r0 + 1, r0, sU[cgi]))
    for i in range(14):
        a('v_lshlrev_b32 v%d, 16, v%d' % (112 + 2 * i, 64 + i))
        a('v_and_b32 v%d, 0xffff0000, v%d' % (113 + 2 * i, 64 + i))
        a('v_lshlrev_b32 v%d, 16, v%d' % (140 + 2 * i, 78 + i))
        a('v_and_b32 v%d, 0xffff0000, v%d' % (141 + 2 * i, 78 + i))
    service()
    gelu_consts(12)
    a('s_mul_i32 %s, %s, 5' % (sU[0], sU[10]))
    a('s_add_u32 %s, %s, %d' % (sU[0], sU[0], cfg.ELO * 256))
    a('s_mov_b32 %s, 0' % sU[8])
    a('v_mov_b32 v47, 0')
    a.label('L_tb')
    a('s_add_u32 %s, %s, %s' % (sU[2], sU[0], sU[8]))
    a('s_lshl_b32 %s, %s, 31' % (sU[3], sU[2]))
    a('s_lshr_b32 %s, %s, 1' % (sU[2], sU[2]))
    a('s_lshl_b32 %s, %s, 16' % (sU[2], sU[2]))
    a('s_or_b32 %s, %s, %s' % (sU[2], sU[2], sU[3]))
    a('v_mov_b32 v10, %s' % sU[2])
    for g0 in range(0, 14, 7):
        idx = list(range(g0, g0 + 7))
        gelu_pairs('v[10:11]', [112 + 2 * i for i in idx], [140 + 2 * i for i in idx], [92 + i for i in idx],
                   [16 + 2 * i for i in range(7)], [30 + 2 * i for i in range(7)], [14, 15], 12, g0 == 0)
    mix_finish([14, 15], sU[2])
    a('s_or_b32 %s, %s, 1' % (sU[2], sU[2]))
    a('s_mov_b32 m0, %s' % sU[8])
    a('s_nop 0')
    a('v_writelane_b32 v47, %s, m0' % sU[2])
    a('s_add_u32 %s, %s, 1' % (sU[8], sU[8]))
    Ln, Lr = NL('L_n'), NL('L_go')
    a('s_cmp_lg_u32 %s, %d' % (sU[8], cfg.gohook))
    a('s_cbranch_scc1 %s' % Ln)
    only_wave(0, Ln)
    a('s_lshl_b32 %s, %s, 2' % (sU[1], sH))
    a('v_mov_b32 v16, %s' % sU[1])
    a.label(Lr)
    a('global_load_dword v17, v16, %s offset:128 sc1' % S_DBG)
    wait_loads(1)
    a('v_cmp_eq_u32 vcc, 0, v17')
    a('s_cbranch_vccnz %s' % Lr)
    a('v_readfirstlane_b32 %s, v17' % sU[1])
    lds_flag(F_GO, sU[1], ['v16', 'v17'])
    lds_wait(F_RDY, '1', ['v16', 'v17'])
    a('s_lshl_b32 %s, %s, 11' % (sKB, sH))
    a('s_add_u32 %s, %s, 0x%x' % (sKB, sKB, QB_OFF))
    a('s_mov_b32 %s, 1' % sKT)
    arm(64, L_QIN, 2)
    rkick()
    a.label(Ln)
    a('s_cmp_lt_u32 %s, 5' % sU[8])
    a('s_cbranch_scc1 L_tb')
    set_lim('s_mov_b32 %s, 16' % sLIM)
    a('v_lshlrev_b32 v10, 2, v0')
    a('s_mov_b64 exec, 31')
    a('buffer_store_dword v47, v10, %s, %s offen sc1' % (SRD_W, sU[5]))
    a('s_mov_b64 exec, -1')
    stamp(26)
    lds_wait(F_GO, '1', ['v10', 'v11'])
    a('s_and_b32 %s, %s, %d' % (sLOC, sU[12], 0 if cfg.force_global else 1))

    def flag(dst, idx): a('v_readlane_b32 %s, v10, %d' % (dst, idx))
    def need_ge(x, y, Lno):
        a('s_cmp_ge_u32 %s, %s' % (x, y))
        a('s_cbranch_scc0 %s' % Lno)
    def need_gt(x, y, Lno):
        a('s_cmp_gt_u32 %s, %s' % (x, y))
        a('s_cbranch_scc0 %s' % Lno)
    def miss(period):
        a('s_cmp_eq_u32 %s, %s' % (sDONE, sOPS))
        a('s_cselect_b32 %s, 0, %s' % (sKC, sKC))
        a('s_sub_u32 %s, %s, 1' % (sKC, sKC))
        a('s_cbranch_scc0 L_common')
        a('s_mov_b32 %s, %d' % (sKC, period - 1))
        a('s_call_b64 %s, L_kick' % RET_K)
        a('s_branch L_common')
    def role_done():
        a('s_mov_b32 %s, 0' % sKN)
        a('s_add_u32 %s, %s, 1' % (sRQ, sRQ))
        a('s_branch L_loop')

    a.label('L_loop')
    service()
    tmo_check()
    a('v_lshlrev_b32 v11, 2, v0')
    a('ds_read_b32 v10, v11 offset:%d' % L_CNT)
    Lna = NL('L_na')
    a('s_cmp_eq_u32 %s, 0' % sKN)
    a('s_cbranch_scc1 %s' % Lna)
    a('v_lshl_add_u32 v22, v0, 4, %s' % sKL)
    a('v_and_b32 v11, 60, v0')
    a('ds_read_b128 v[12:15], v22')
    a('ds_read_b128 v[16:19], v22 offset:1024')
    a('v_add_u32 v11, %s, v11' % sKL)
    a('v_add_u32 v11, 2048, v11')
    a('ds_read2_b32 v[20:21], v11 offset0:0 offset1:16')
    a.label(Lna)
    a('s_lshr_b32 %s, %s, 1' % (sB, sRQ))
    a('s_cmp_eq_u32 %s, 1' % sW)
    a('s_waitcnt lgkmcnt(0)')
    a('s_cbranch_scc1 L_role1')
    a('s_cmp_eq_u32 %s, 2' % sW)
    a('s_cbranch_scc1 L_role2')
    a('s_cmp_eq_u32 %s, 3' % sW)
    a('s_cbranch_scc1 L_role3')

    Larm, Lodd, Lgo = NL('L_r'), NL('L_r'), NL('L_r')
    a('s_cmp_eq_u32 %s, 0' % sKN)
    a('s_cbranch_scc1 %s' % Larm)
    tagcheck(vl(12, 20), sKT, 'v22', 31)
    Lok = NL('L_ok')
    a('s_cbranch_vccz %s' % Lok)
    miss(cfg.KN)
    a.label(Lok)
    a('s_mov_b32 %s, 0x07060302' % sU[1])
    for i in range(4): a('v_perm_b32 v%d, v%d, v%d, %s' % (20 + i, 13 + 2 * i, 12 + 2 * i, sU[1]))
    a('s_sub_u32 %s, %s, 1' % (sU[0], sKT))
    a('s_lshr_b32 %s, %s, 3' % (sU[1], sU[0]))
    a('s_and_b32 %s, %s, 7' % (sB, sU[0]))
    a('s_add_u32 %s, %s, 1' % (sU[0], sB))
    a('s_lshl_b32 %s, %s, 10' % (sU[2], sU[1]))
    a('s_add_u32 %s, %s, %d' % (sU[2], sU[2], L_QS))
    a('v_lshl_add_u32 v10, v0, 3, %s' % sU[2])
    a('ds_write_b64 v10, v[20:21]')
    a('ds_write_b64 v10, v[22:23] offset:512')
    a('s_lshl2_add_u32 %s, %s, %d' % (sU[1], sU[1], L_CNT + 4 * F_Q))
    a('v_mov_b32 v10, %s' % sU[1])
    a('v_mov_b32 v11, %s' % sU[0])
    a('ds_write_b32 v10, v11')
    role_done()
    a.label(Larm)
    a('s_bitcmp1_b32 %s, 0' % sRQ)
    a('s_cbranch_scc1 %s' % Lodd)
    need_ge(sC0, sRQ, 'L_common')
    a('s_cmp_gt_u32 %s, 16' % sRQ)
    a('s_cbranch_scc1 L_common')
    a('s_sub_u32 %s, %s, 1' % (sB, sB))
    a('s_add_u32 %s, %s, 9' % (sKT, sB))
    slot_off(sKB, QB_OFF + 0x20000)
    a('s_branch %s' % Lgo)
    a.label(Lodd)
    a('s_add_u32 %s, %s, 1' % (sB, sB))
    Lskip = NL('L_r')
    a('s_cmp_lt_u32 %s, 8' % sB)
    a('s_cbranch_scc1 %s' % Lskip)
    a('s_add_u32 %s, %s, 1' % (sRQ, sRQ))
    a('s_branch L_common')
    a.label(Lskip)
    flag(sU[0], C_DONE)
    a('s_max_u32 %s, %s, 2' % (sU[1], sRQ))
    a('s_sub_u32 %s, %s, 1' % (sU[1], sU[1]))
    need_ge(sU[0], sU[1], 'L_common')
    a('s_add_u32 %s, %s, 1' % (sKT, sB))
    slot_off(sKB, QB_OFF)
    a.label(Lgo)
    a('s_lshl_b32 %s, %s, 11' % (sU[0], sH))
    a('s_add_u32 %s, %s, %s' % (sKB, sKB, sU[0]))
    arm(64, L_QIN, 2)
    miss(cfg.KN)

    def role_or(layer):
        a.label('L_role%d' % (1 + layer))
        Larm, Lodd, Lr, Lok, Lok2 = [NL('L_r') for _ in range(5)]
        inb = L_INB + 2304 * layer
        a('s_cmp_eq_u32 %s, 0' % sKN)
        a('s_cbranch_scc1 %s' % Larm)
        a('s_bitcmp1_b32 %s, 0' % sRQ)
        a('s_cbranch_scc1 %s' % Lr)
        tagcheck(vl(12, 22), sKT, 'v22')
        a('s_cbranch_vccz %s' % Lok)
        miss(cfg.KN)
        a.label(Lok)
        stamp(7 + layer)
        a('v_max_f32 v22, v20, v21')
        for m in ROR: a('v_max_f32_dpp v22, v22, v22 ' + m)
        xrow('v_max_f32', ['v22'], ['v23'])
        a('v_sub_f32 v20, v20, v22')
        a('v_sub_f32 v21, v21, v22')
        a('v_exp_f32 v20, v20')
        a('v_exp_f32 v21, v21')
        for c in (0, 2): a('v_pk_mul_f32 %s, %s, v[20:21] op_sel_hi:[1,0]' % (vr(12 + c, 2), vr(12 + c, 2)))
        for c in (0, 2): a('v_pk_fma_f32 %s, %s, v[20:21], %s op_sel:[0,1,0] op_sel_hi:[1,1,1]' % (vr(12 + c, 2), vr(16 + c, 2), vr(12 + c, 2)))
        a('v_add_f32 v16, v20, v21')
        R5 = vl(12, 17)
        for m in ROR:
            for r in R5: a('v_add_f32_dpp %s, %s, %s %s' % (r, r, r, m))
        xrow('v_add_f32', R5, vl(17, 22))
        a('v_rcp_f32 v16, v16')
        a('v_lshlrev_b32 v10, 3, v0')
        a('s_add_u32 %s, %s, 1' % (sU[5], sB))
        for c in (0, 2): a('v_pk_mul_f32 %s, %s, v[16:17] op_sel_hi:[1,0]' % (vr(12 + c, 2), vr(12 + c, 2)))
        a('v_cvt_pk_bf16_f32 v18, v12, v13')
        a('v_cvt_pk_bf16_f32 v19, v14, v15')
        a('s_mov_b64 exec, 15')
        a('ds_write_b64 v10, v[18:19] offset:%d' % (L_MBO + 32 * layer))
        lds_flag(F_O + layer, sU[5], ['v10', 'v11'])
        role_done()
        a.label(Lr)
        tagcheck(vl(12, 20), sKT, 'v22')
        a('s_cbranch_vccz %s' % Lok2)
        miss(cfg.KN)
        a.label(Lok2)
        stamp(11 + layer)
        R4 = vl(12, 16)
        for c in (0, 2): a('v_pk_add_f32 %s, %s, %s' % (vr(12 + c, 2), vr(12 + c, 2), vr(16 + c, 2)))
        for m in ROR:
            for r in R4: a('v_add_f32_dpp %s, %s, %s %s' % (r, r, r, m))
        xrow('v_add_f32', R4, vl(16, 20))
        a('s_add_u32 %s, %s, 1' % (sU[5], sB))
        for r in R4: a('v_bfi_b32 %s, -16, %s, %s' % (r, r, sU[5]))
        if layer == 0:
            a('v_lshrrev_b32 v11, 2, v0')
            a('v_and_b32 v10, 3, v0')
            a('v_lshlrev_b32 v11, 15, v11')
            a('v_lshl_add_u32 v11, v10, 4, v11')
            a('s_lshl_b32 %s, %s, 18' % (sU[0], sB))
            a('s_lshl_b32 %s, %s, 10' % (sU[1], sSP))
            a('s_add_u32 %s, %s, %s' % (sU[0], sU[0], sU[1]))
            a('s_lshl_b32 %s, %s, 7' % (sU[1], sH))
            a('s_add_u32 %s, %s, %s' % (sU[0], sU[0], sU[1]))
            a('s_add_u32 %s, %s, 0x%x' % (sU[0], sU[0], XG_OFF))
            a('s_mov_b32 exec_hi, 0')
        else:
            a('v_lshlrev_b32 v11, 4, v0')
            slot_off(sU[0], XP_OFF)
            a('s_add_u32 %s, %s, %s' % (sU[0], sU[0], sYREC))
            a('s_mov_b64 exec, 15')
        a('buffer_store_dwordx4 v[12:15], v11, %s, %s offen sc1' % (SRD_W, sU[0]))
        lds_flag(F_X + layer, sU[5], ['v10', 'v11'])
        stamp(13 + layer)
        role_done()
        a.label(Larm)
        a('s_cmp_ge_u32 %s, 16' % sRQ)
        a('s_cbranch_scc1 L_common')
        a('s_bitcmp1_b32 %s, 0' % sRQ)
        a('s_cbranch_scc1 %s' % Lodd)
        a('s_lshl2_add_u32 %s, %s, %s' % (sU[0], sAB, sAS))
        a('s_lshl2_add_u32 %s, %s, %d' % (sU[1], sB, 2 if layer == 0 else 8))
        need_ge(sU[0], sU[1], 'L_common')
        tag_of(sKT, 1)
        set_off(sKB, OB_OFF, OB_SET, layer)
        a('s_add_u32 %s, %s, %s' % (sKB, sKB, sOREC))
        arm(8 * 2560, inb, 3, 1)
        a('s_branch L_common')
        a.label(Lodd)
        if layer == 0: need_ge(sC0, sRQ, 'L_common')
        else: need_gt(sC1, sB, 'L_common')
        tag_of(sKT, 5)
        set_off(sKB, YL_OFF, YL_SET, layer)
        a('s_add_u32 %s, %s, %s' % (sKB, sKB, sYREC))
        arm(16384, inb, 2, 1)
        a('s_branch L_common')
    role_or(0)
    role_or(1)

    a.label('L_role3')
    Larm, Lodd, Lr, Lok, Lok2 = [NL('L_r') for _ in range(5)]
    a('s_cmp_eq_u32 %s, 0' % sKN)
    a('s_cbranch_scc1 %s' % Larm)
    a('s_bitcmp1_b32 %s, 0' % sRQ)
    a('s_cbranch_scc1 %s' % Lr)
    tagcheck(vl(12, 16), sKT, 'v22')
    a('s_cmp_eq_u32 vcc_lo, 0')
    a('s_cbranch_scc1 %s' % Lok)
    miss(cfg.KX)
    a.label(Lok)
    stamp(15)
    a('v_and_b32 v11, 3, v0')
    a('s_lshl_b32 %s, %s, 5' % (sU[0], sB))
    a('v_lshl_add_u32 v10, v11, 3, %s' % sU[0])
    a('ds_read_b64 v[20:21], v10 offset:%d' % L_XR)
    R4 = vl(12, 16)
    for m in ROR:
        for r in R4: a('v_add_f32_dpp %s, %s, %s %s' % (r, r, r, m))
    xrow('v_add_f32', R4, vl(16, 20), swaps=('v_permlane16_swap_b32',))
    bf16r(R4, None)
    slot_off(sU[0], ROW_OFF)
    a('s_add_u32 %s, %s, %s' % (sU[0], sU[0], sYREC))
    a('v_lshlrev_b32 v11, 4, v0')
    a('s_waitcnt lgkmcnt(0)')
    a('v_lshlrev_b32 v16, 16, v20\nv_and_b32 v17, 0xffff0000, v20\nv_lshlrev_b32 v18, 16, v21\nv_and_b32 v19, 0xffff0000, v21')
    for c in (0, 2): a('v_pk_add_f32 %s, %s, %s' % (vr(12 + c, 2), vr(12 + c, 2), vr(16 + c, 2)))
    bf16r(R4, None)
    for r in R4: a('v_or_b32 %s, %s, %s' % (r, sKT, r))
    a('s_mov_b64 exec, 15')
    lstore('buffer_store_dwordx4 v[12:15], v11, %s, %s offen' % (SRD_W, sU[0]))
    a('s_mov_b64 exec, -1')
    stamp(19)
    role_done()
    a.label(Lr)
    tagcheck(vl(12, 20), sKT, 'v22')
    a('s_cbranch_vccz %s' % Lok2)
    miss(cfg.KN)
    a.label(Lok2)
    lds_flag(F_ROW, sKT, ['v10', 'v11'])
    stamp(20)
    role_done()
    a.label(Larm)
    a('s_cmp_ge_u32 %s, 16' % sRQ)
    a('s_cbranch_scc1 L_common')
    a('s_add_u32 %s, %s, 1' % (sKT, sB))
    a('s_bitcmp1_b32 %s, 0' % sRQ)
    a('s_cbranch_scc1 %s' % Lodd)
    flag(sU[0], F_X)
    flag(sU[1], C_TG)
    need_gt(sU[0], sB, 'L_common')
    need_gt(sU[1], 0, 'L_common')
    a('s_lshl_b32 %s, %s, 18' % (sKB, sB))
    a('s_lshl_b32 %s, %s, 15' % (sU[1], sH))
    a('s_add_u32 %s, %s, %s' % (sKB, sKB, sU[1]))
    a('s_lshl_b32 %s, %s, 10' % (sU[1], sSP))
    a('s_add_u32 %s, %s, %s' % (sKB, sKB, sU[1]))
    a('s_add_u32 %s, %s, 0x%x' % (sKB, sKB, XG_OFF))
    arm(128, L_XG, 1, cfg.dX)
    a('s_branch L_common')
    a.label(Lodd)
    slot_off(sKB, ROW_OFF)
    a('s_lshl_b32 %s, %s, 11' % (sU[0], sH))
    a('s_add_u32 %s, %s, %s' % (sKB, sKB, sU[0]))
    arm(64, L_ROW, 2, 1)

    def o_part(layer):
        a('v_bfe_u32 v30, v0, 2, 2')
        a('v_lshlrev_b32 v30, 3, v30')
        a('ds_read_b64 v[18:19], v30 offset:%d' % (L_MBO + 32 * layer))
        tag_of(sTAG, 5)
        a('v_lshlrev_b32 v10, 3, v0')
        set_off(sU[2], YL_OFF, YL_SET, layer)
        a('s_lshl_b32 %s, %s, 9' % (sU[0], sW))
        a('s_lshl_b32 %s, %s, 11' % (sU[1], sWG))
        a('s_add_u32 %s, %s, %s' % (sU[0], sU[0], sU[1]))
        a('s_add_u32 %s, %s, %s' % (sU[0], sU[0], sU[2]))
        a('s_waitcnt lgkmcnt(0)')
        for aa in range(4):
            for cgi in range(2):
                acc = vr(20 + 4 * cgi, 4)
                a('v_mfma_f32_4x4x4_16b_bf16 %s, v[18:19], %s, %s cbsz:4 abid:%d' %
                  (acc, vr(WO0 + aa * 4 + cgi * 2, 2), '0' if aa == 0 else acc, aa))
        a('v_bfi_b32 v12, -16, v20, %s' % sTAG)
        a('v_bfi_b32 v13, -16, v24, %s' % sTAG)
        lstore('buffer_store_dwordx2 v[12:13], v10, %s, %s offen' % (SRD_W, sU[0]))
        stamp(9 + layer)

    def wq_frags():
        a('v_lshlrev_b32 v8, 4, v0')
        for k in range(4): a('buffer_load_dwordx4 %s, v8, %s, %s offen offset:%d sc1' % (vr(30 + 4 * k, 4), SRD_W, sWQS, 1024 * k))
        issued(4)

    def dbg8(kind):
        if not cfg.stamps: return
        a('s_lshl_b32 %s, %s, 11' % (sU[1], sB))
        a('s_add_u32 %s, %s, 0x%x' % (sU[1], sU[1], XDBG_OFF + kind * 0x4000))
        a('v_lshlrev_b32 v3, 5, v0')
        a('buffer_store_dwordx4 v[10:13], v3, %s, %s offen' % (SRD_W, sU[1]))
        a('buffer_store_dwordx4 v[14:17], v3, %s, %s offen offset:16' % (SRD_W, sU[1]))

    def lookup(n, h0, Y, padmask, reload):
        for c in range(n): a('v_lshrrev_b32 v%d, 31, v%d' % (Y[c], h0 + c))
        for c in range(n): a('v_bfe_u32 v%d, v%d, 14, 17' % (h0 + c, h0 + c))
        for c in range(n): a('v_lshl_add_u32 v%d, v%d, 1, v%d' % (h0 + c, Y[c], h0 + c))
        for c in range(n): a('v_subrev_u32 v%d, %d, v%d' % (h0 + c, cfg.ELO * 512, h0 + c))
        for c in range(n): a('v_min_u32 v%d, 10238, v%d' % (Y[c], h0 + c))
        for c in range(n): a('ds_read_u16 v%d, v%d offset:%d' % (Y[c], Y[c], L_TBL))
        a('v_max3_u32 v8, v%d, v%d, v%d' % (h0, h0 + 1, h0 + 2))
        for c in range(3, n - 1, 2): a('v_max3_u32 v8, v8, v%d, v%d' % (h0 + c, h0 + c + 1))
        a('v_max_u32 v8, v8, v%d' % (h0 + n - 1))
        a('v_cmp_lt_u32 vcc, 10239, v8')
        Lok = NL('L_ok')
        a('s_waitcnt lgkmcnt(0)')
        for c in range(n): a('v_lshlrev_b32 v%d, 16, v%d' % (Y[c], Y[c]))
        a('s_cbranch_vccz %s' % Lok)
        if reload: wait_seq()
        for c in range(n):
            L1, L2 = NL('L_fb'), NL('L_fe')
            a('v_cmp_lt_u32 vcc, 10239, v%d' % (h0 + c))
            a('s_mov_b64 s[78:79], vcc')
            lo, hi = padmask(c)
            a('s_and_b32 s78, s78, 0x%x' % lo)
            a('s_and_b32 s79, s79, 0x%x' % hi)
            a.label(L1)
            a('s_cmp_eq_u64 s[78:79], 0')
            a('s_cbranch_scc1 %s' % L2)
            a('s_ff1_i32_b64 s80, s[78:79]')
            a('s_bitset0_b64 s[78:79], s80')
            a('v_readlane_b32 s76, v%d, s80' % (h0 + c))
            a('s_call_b64 %s, L_eval' % RET_F)
            a('s_mov_b32 m0, s80')
            a('s_nop 0')
            a('v_writelane_b32 v%d, s76, m0' % Y[c])
            a('s_branch %s' % L1)
            a.label(L2)
        if reload: wq_frags()
        a.label(Lok)

    def second_ln_stats():
        a('v_sub_f32 v26, v26, v28')
        a('v_mul_f32 v27, v27, v29')
        a('v_mul_f32 v26, v26, v29')
        a('v_mul_f32 v27, v27, v29')

    def task_MQ():
        stamp(27)
        a('v_lshlrev_b32 v18, 5, v0')
        a('ds_read_b128 v[10:13], v18 offset:%d' % L_ROW)
        a('ds_read_b128 v[14:17], v18 offset:%d' % (L_ROW + 16))
        wq_frags()
        a('s_waitcnt lgkmcnt(0)')
        for c in range(8): a('v_and_b32 v%d, 0xffff0000, v%d' % (10 + c, 10 + c))
        dbg8(0)
        stats8(10, 18, True)
        quick()
        ln_finish('v26', 'v27', 'v28', 'v29')
        second_ln_stats()
        ln_vec(10, 18, 8, 28)
        quick()
        ln_finish('v26', 'v27', 'v28', 'v29')
        ln_vec(18, 18, 8, 28)
        quick()
        Y = [6, 7, 26, 27, 28, 29, 46, 47]
        lookup(8, 18, Y, lambda c: (0xffffffff, 0xffffffff) if c < 6 else (0x55555555, 0x55555555), True)
        stamp(21)
        rkick()
        for c in range(0, 8, 2): a('v_pk_add_f32 %s, %s, %s' % (vr(10 + c, 2), vr(10 + c, 2), vr(Y[c], 2)))
        bf16r(vl(10, 18), None)
        dbg8(1)
        Ln = NL('L_n')
        a('s_cmp_lg_u32 %s, %s' % (sFIN, sB))
        a('s_cbranch_scc1 %s' % Ln)
        only_wave(0, Ln)
        a('s_lshl_b32 %s, %s, 11' % (sU[1], sB))
        a('s_add_u32 %s, %s, 0x%x' % (sU[1], sU[1], XS_OFF))
        a('v_lshlrev_b32 v18, 5, v0')
        a('buffer_store_dwordx4 v[10:13], v18, %s, %s offen sc1' % (SRD_W, sU[1]))
        a('buffer_store_dwordx4 v[14:17], v18, %s, %s offen offset:16 sc1' % (SRD_W, sU[1]))
        a.label(Ln)
        quick()
        stats8(10, 18, True)
        quick()
        ln_finish('v26', 'v27', 'v28', 'v29')
        ln_vec(10, 18, 8, 28, final_round=False)
        for i in range(4): a('v_cvt_pk_bf16_f32 v%d, v%d, v%d' % (26 + i, 18 + 2 * i, 19 + 2 * i))
        a('v_cndmask_b32 v29, 0, v29, vcc')
        a('v_lshlrev_b32 v46, 4, v0')
        a('s_lshl_b32 %s, %s, 4' % (sU[0], sW))
        a('s_lshl_b64 exec, 0xffff, %s' % sU[0])
        a('ds_write_b128 v46, v[26:29] offset:%d' % L_NST)
        a('s_mov_b64 exec, -1')
        a('v_and_b32 v47, 48, v0')
        a('s_lshl_b32 %s, %s, 8' % (sU[0], sW))
        a('v_add_u32 v47, %s, v47' % sU[0])
        for k in range(4): a('ds_read_b128 %s, v47 offset:%d' % (vr(10 + 4 * k, 4), L_NST + 64 * k))
        slot_off(sU[0], QB_OFF + 0x20000)
        a('s_add_u32 %s, %s, %s' % (sU[0], sU[0], sYREC))
        a('s_add_u32 %s, %s, 9' % (sU[1], sB))
        a('s_lshl_b32 %s, %s, 6' % (sU[2], sW))
        a('v_lshl_add_u32 v46, v0, 2, %s' % sU[2])
        wait_seq()
        a('s_waitcnt lgkmcnt(0)')
        for k in range(4):
            a('v_mfma_f32_16x16x32_bf16 v[26:29], %s, %s, %s' % (vr(10 + 4 * k, 4), vr(30 + 4 * k, 4), '0' if k == 0 else 'v[26:29]'))
        a('s_mov_b64 exec, 0xffff')
        a('ds_write_b32 v46, v26 offset:%d' % L_QP)
        a('s_mov_b64 exec, -1')
        Ld = NL('L_qd')
        last_arriver(C_QP, Ld, ['v47', 'v46'])
        a('v_lshlrev_b32 v10, 2, v0')
        a('v_and_b32 v11, 60, v10')
        a('v_add_u32 v11, %d, v11' % L_QP)
        a('ds_read2_b32 v[12:13], v11 offset0:0 offset1:16')
        a('ds_read2_b32 v[14:15], v11 offset0:32 offset1:48')
        a('s_waitcnt lgkmcnt(0)')
        a('v_pk_add_f32 v[12:13], v[12:13], v[14:15]')
        a('v_add_f32 v12, v12, v13')
        a('v_cvt_pk_bf16_f32 v11, v12, v12')
        a('v_lshl_or_b32 v11, v11, 16, %s' % sU[1])
        a('s_mov_b64 exec, 0xffff')
        lstore('buffer_store_dword v11, v10, %s, %s offen' % (SRD_W, sU[0]))
        a('s_mov_b64 exec, -1')
        a.label(Ld)
        stamp(17)

    def task_TG():
        Lr = NL('L_tg')
        a('v_and_b32 v10, 7, v0')
        a('v_lshlrev_b32 v10, 2, v10')
        a.label(Lr)
        a('global_load_dword v11, v10, %s offset:128 sc1' % S_DBG)
        wait_loads(1)
        a('v_cmp_eq_u32 vcc, 0, v11')
        a('s_cbranch_vccnz %s' % Lr)
        a.label('L_tg2')
        a('s_add_u32 %s, %s, %s' % (sU[4], sW, sTG))
        a('s_mul_i32 %s, %s, 5120' % (sU[0], sU[4]))
        a('s_add_u32 %s, %s, 0x%x' % (sU[0], sU[0], TB_OFF))
        a('s_add_u32 %s, %s, 4096' % (sU[1], sU[0]))
        a('v_lshlrev_b32 v10, 4, v0')
        def issue():
            for i in range(5):
                a('buffer_load_dwordx4 %s, v10, %s, %s offen offset:%d sc1' % (vr(12 + 4 * i, 4), SRD_W, sU[i >> 2], 1024 * (i & 3)))
        poll(issue, 5, vl(12, 32), '1', 'v11')
        a('s_mov_b32 %s, 0x07060302' % sU[1])
        for i in range(10): a('v_perm_b32 v%d, v%d, v%d, %s' % (32 + i, 13 + 2 * i, 12 + 2 * i, sU[1]))
        a('s_mul_i32 %s, %s, 2560' % (sU[0], sU[4]))
        a('v_lshl_add_u32 v10, v0, 3, %s' % sU[0])
        for i in range(5): a('ds_write_b64 v10, %s offset:%d' % (vr(32 + 2 * i, 2), L_TBL + 512 * i))
        lds_flag(C_TG, '1', ['v10', 'v11'], op='ds_add_u32')
        a('s_add_u32 %s, %s, 1' % (sTG, sTG))
        a('s_cmp_lt_u32 %s, 2' % sTG)
        a('s_cbranch_scc1 L_tg2')
        stamp(30)

    a.label('L_common')
    La, Lm, Lc1, Lt, Lend = NL('L_ca'), NL('L_cm'), NL('L_c1'), NL('L_ct'), NL('L_ce')
    a('s_lshr_b32 %s, %s, 1' % (sB, sC0))
    a('s_bitcmp1_b32 %s, 0' % sC0)
    a('s_cbranch_scc1 %s' % Lm)
    flag(sU[0], F_O)
    need_gt(sU[0], sB, La)
    o_part(0)
    a('s_add_u32 %s, %s, 1' % (sC0, sC0))
    a('s_branch L_loop')
    a.label(Lm)
    flag(sU[0], F_ROW)
    flag(sU[1], C_TG)
    need_gt(sU[0], sB, Lt)
    need_ge(sU[1], 4, Lt)
    need_gt(sAB, sB, La)
    task_MQ()
    a('s_add_u32 %s, %s, 1' % (sC0, sC0))
    a('s_branch L_loop')
    a.label(Lt)
    a('s_cmp_lg_u32 %s, 0' % sTG)
    a('s_cbranch_scc1 %s' % La)
    a('s_bitcmp1_b32 %s, 0' % sW)
    a('s_cbranch_scc1 %s' % La)
    task_TG()
    a('s_branch L_loop')
    a.label(La)
    L1, L2, Lnx = NL('L_p1'), NL('L_p2'), NL('L_nx')
    a('s_mov_b32 %s, %s' % (sB, sAB))
    a('s_cmp_eq_u32 %s, 1' % sAS)
    a('s_cbranch_scc1 %s' % L1)
    a('s_cmp_eq_u32 %s, 2' % sAS)
    a('s_cbranch_scc1 %s' % L2)
    a('s_lshl3_add_u32 %s, %s, 4' % (sU[2], sB))
    need_ge(sMOV, sU[2], Lc1)
    flag(sU[0], F_Q)
    flag(sU[1], C_DONE)
    need_gt(sU[0], sB, Lc1)
    need_ge(sU[1], sNC, Lc1)
    stamp(24)
    a('s_mov_b32 %s, 0' % sPASS)
    by_parity('L_head')
    stash_addr('v12', 'v13')
    a('s_mov_b32 exec_lo, 0x00030003')
    a('s_mov_b32 exec_hi, 0x00030003')
    a('ds_write_b128 v12, v[28:31]')
    a('ds_write_b128 v12, v[32:35] offset:16')
    a('ds_write_b64 v12, v[10:11] offset:256')
    a('s_mov_b64 exec, -1')
    a('s_mov_b32 %s, 1' % sAS)
    stamp(25)
    a('s_branch L_loop')
    a.label(L1)
    a('s_lshl3_add_u32 %s, %s, %d' % (sU[2], sB, 8 - cfg.early))
    need_ge(sMOV, sU[2], Lc1)
    a('s_lshl_b32 %s, %s, 1' % (sU[2], sB))
    a('s_add_u32 %s, %s, 1' % (sU[0], sC0))
    need_ge(sU[0], sU[2], Lc1)
    Lw2 = NL('L_w2')
    only_wave(2, Lw2)
    a('s_add_u32 %s, %s, 2' % (sU[0], sRQ))
    need_ge(sU[0], sU[2], Lc1)
    a.label(Lw2)
    tag_of(sTAG, 1)
    a('s_mov_b32 %s, 0' % sPASS)
    stash_addr('v12', 'v13')
    a('ds_read_b128 v[28:31], v12')
    a('ds_read_b128 v[32:35], v12 offset:16')
    a('ds_read_b64 v[10:11], v12 offset:256')
    by_parity('L_tailA')
    stamp(5)
    a('s_mov_b32 %s, 2' % sAS)
    a('s_cmp_eq_u32 %s, 0' % sAB)
    a('s_cbranch_scc1 %s' % Lnx)
    a('s_branch L_loop')
    a.label(L2)
    flag(sU[0], F_Q + 1)
    need_ge(sU[0], sAB, Lc1)
    a('s_sub_u32 %s, %s, 1' % (sB, sAB))
    need_ge(sC1, sB, Lc1)
    tag_of(sTAG, 1)
    a('s_mov_b32 %s, 1' % sPASS)
    stamp(4)
    by_parity('L_head')
    by_parity('L_tailB')
    stamp(6)
    a.label(Lnx)
    a('s_add_u32 %s, %s, 1' % (sAB, sAB))
    a('s_cmp_eq_u32 %s, 8' % sAB)
    a('s_cselect_b32 %s, 2, 0' % sAS)
    a('s_branch L_loop')
    a.label(Lc1)
    a('s_mov_b32 %s, %s' % (sB, sC1))
    flag(sU[0], F_O + 1)
    need_gt(sU[0], sB, Lend)
    o_part(1)
    a('s_add_u32 %s, %s, 1' % (sC1, sC1))
    a('s_branch L_loop')
    a.label(Lend)
    a('s_cmp_lt_u32 %s, 8' % sC1)
    a('s_cbranch_scc1 L_loop')
    a('s_cmp_lt_u32 %s, 16' % sRQ)
    a('s_cbranch_scc1 L_loop')

    a('s_cmp_gt_u32 %s, 7' % sFIN)
    a('s_cbranch_scc1 L_exit')
    a('s_mov_b32 %s, %s' % (sB, sFIN))
    a('s_add_u32 %s, %s, 1' % (sTAG, sB))
    a('s_lshl_b32 %s, %s, 11' % (sU[8], sB))
    a('s_lshl_b32 %s, %s, 9' % (sU[2], sW))
    a('s_add_u32 %s, %s, %s' % (sU[8], sU[8], sU[2]))
    a('s_add_u32 %s, %s, 0x%x' % (sU[8], sU[8], XS_OFF))
    a('v_and_b32 v47, 31, v0')
    a('v_lshlrev_b32 v46, 4, v47')
    a('buffer_load_dwordx4 v[30:33], v46, %s, %s offen sc1' % (SRD_W, sU[8]))
    record(1)
    slot_off(sU[0], XP_OFF)
    a('s_add_u32 %s, %s, %s' % (sU[0], sU[0], sU[2]))
    a('s_add_u32 %s, %s, 4096' % (sU[1], sU[0]))
    a('v_lshrrev_b32 v47, 5, v0')
    a('v_lshl_add_u32 v46, v47, 13, v46')
    lds_wait(F_X + 1, sTAG, ['v10', 'v11'])
    stamp(28)
    def issue():
        for i in range(4):
            a('buffer_load_dwordx4 %s, v46, %s, %s offen offset:%d sc1' % (vr(10 + 4 * i, 4), SRD_W, sU[i >> 1], 2048 * (i & 1)))
    poll(issue, 4, vl(10, 26), sTAG, 'v47')
    stamp(16)
    for c in (0, 2): a('v_pk_add_f32 %s, %s, %s' % (vr(10 + c, 2), vr(10 + c, 2), vr(14 + c, 2)))
    for c in (0, 2): a('v_pk_add_f32 %s, %s, %s' % (vr(18 + c, 2), vr(18 + c, 2), vr(22 + c, 2)))
    for c in (0, 2): a('v_pk_add_f32 %s, %s, %s' % (vr(10 + c, 2), vr(10 + c, 2), vr(18 + c, 2)))
    xrow('v_add_f32', vl(10, 14), vl(14, 18), swaps=('v_permlane32_swap_b32',))
    bf16r(vl(10, 14), None)
    for c in (0, 2): a('v_pk_add_f32 %s, %s, %s' % (vr(10 + c, 2), vr(10 + c, 2), vr(30 + c, 2)))
    bf16r(vl(10, 14), None)
    if cfg.stamps:
        a('s_add_u32 %s, %s, 0x%x' % (sU[1], sU[8], XDBG_OFF + 0x8000 - XS_OFF))
        a('v_lshlrev_b32 v3, 4, v0')
        a('s_mov_b32 exec_hi, 0')
        a('buffer_store_dwordx4 v[10:13], v3, %s, %s offen' % (SRD_W, sU[1]))
        a('s_mov_b64 exec, -1')
    a('v_readlane_b32 %s, v10, 0' % sU[3])
    a('s_mov_b32 vcc_lo, 0x77777777')
    a('s_mov_b32 vcc_hi, 0x77777777')
    for c in range(4): a('v_subrev_f32 v%d, %s, v%d' % (14 + c, sU[3], 10 + c))
    a('v_cndmask_b32 v16, 0, v16, vcc')
    a('v_cndmask_b32 v17, 0, v17, vcc')
    a('v_add_f32 v18, v14, v15')
    a('v_mul_f32 v19, v14, v14')
    a('v_add_f32 v20, v16, v17')
    a('v_fmac_f32 v19, v15, v15')
    a('v_add_f32 v18, v18, v20')
    a('v_fmac_f32 v19, v16, v16')
    a('v_mov_b32 v20, %s' % sU[3])
    a('v_fmac_f32 v19, v17, v17')
    a('v_mov_b32 v21, 1')
    a('s_lshl_b32 %s, %s, 4' % (sU[4], sW))
    a('v_mov_b32 v22, %s' % sU[4])
    a('v_and_b32 v23, 3, v0')
    a('v_lshlrev_b32 v23, 4, v23')
    wave_sum(['v18', 'v19'], 5)
    a('s_mov_b32 exec_lo, 0x80000000')
    a('s_mov_b32 exec_hi, 0')
    a('ds_write_b128 v22, v[18:21] offset:%d' % L_MX)
    a('s_mov_b64 exec, -1')
    Lr, Ld = NL('L_xr'), NL('L_xd')
    a('v_mov_b32 v20, %s' % f32(112.0))
    a.label(Lr)
    a('ds_read_b128 v[14:17], v23 offset:%d' % L_MX)
    a('s_waitcnt lgkmcnt(0)')
    a('v_cmp_ne_u32 vcc, 1, v17')
    a('s_cbranch_vccz %s' % Ld)
    tmo_check()
    a('s_branch %s' % Lr)
    a.label(Ld)
    a('v_fma_f32 v26, v16, v20, v14')
    a('v_mul_f32 v14, -2.0, v14')
    wave_sum(['v26'], 2)
    a('v_mul_f32 v26, %s, v26' % f32(1.0 / 448))
    a('v_sub_f32 v16, v26, v16')
    a('v_fmac_f32 v14, v16, v20')
    a('v_fmac_f32 v15, v16, v14')
    wave_sum(['v15'], 2)
    a('v_mul_f32 v27, %s, v15' % f32(1.0 / 448))
    a('v_max_f32 v27, 0, v27')
    ln_finish('v26', 'v27', 'v28', 'v29')
    second_ln_stats()
    ln_vec(10, 18, 4, 28)
    ln_finish('v26', 'v27', 'v28', 'v29')
    ln_vec(18, 18, 4, 28)
    lookup(4, 18, [22, 23, 24, 25], lambda c: (0xffffffff, 0) if c < 2 else (0x77777777, 0), False)
    for c in (0, 2): a('v_pk_add_f32 %s, %s, %s' % (vr(10 + c, 2), vr(10 + c, 2), vr(22 + c, 2)))
    a('v_cvt_pk_bf16_f32 v14, v10, v11')
    a('v_cvt_pk_bf16_f32 v15, v12, v13')
    col_in_wave('v46', 'v47')
    a('s_mul_i32 %s, %s, 896' % (sU[1], sB))
    a('s_mul_i32 %s, %s, 224' % (sU[2], sW))
    a('s_add_u32 %s, %s, %s' % (sU[1], sU[1], sU[2]))
    a('v_lshl_add_u32 v46, v46, 1, %s' % sU[1])
    a('s_mov_b32 exec_hi, 0')
    a('global_store_dword v46, v14, %s' % S_OUT)
    a('s_mov_b32 exec_lo, 0x77777777')
    a('global_store_dword v46, v15, %s offset:4' % S_OUT)
    a('s_mov_b64 exec, -1')
    stamp(18)
    a.label('L_exit')
    a('s_endpgm')
    flush_stubs()

    a.label('L_kick')
    L1 = NL('L_k1')
    a('s_mov_b32 m0, %s' % sKL)
    a('s_cmp_eq_u32 %s, 1' % sKN)
    a('s_cbranch_scc1 %s' % L1)
    a('s_lshl4_add_u32 %s, %s, %s' % (sT[0], sKS, sKB))
    a('buffer_load_dwordx4 %s, %s, %s offen sc1 lds' % (vKV, SRD_W, sKB))
    a('s_add_u32 m0, m0, 1024')
    record(sKN)
    a('buffer_load_dwordx4 %s, %s, %s offen sc1 lds' % (vKV, SRD_W, sT[0]))
    a('s_cmp_eq_u32 %s, 2' % sKN)
    L2 = NL('L_k2')
    a('s_cbranch_scc1 %s' % L2)
    a('v_and_b32 v3, 31, v0')
    a('s_add_u32 m0, m0, 1024')
    a('v_mul_u32_u24 v3, %s, v3' % sKS)
    a('s_add_u32 %s, %s, 64' % (sT[0], sKB))
    a('buffer_load_dword v3, %s, %s offen sc1 lds' % (SRD_W, sT[0]))
    a.label(L2)
    a('s_setpc_b64 %s' % RET_K)
    a.label(L1)
    a('s_mov_b32 exec_hi, 0')
    a('buffer_load_dwordx4 %s, %s, %s offen sc1 lds' % (vKV, SRD_W, sKB))
    a('s_mov_b64 exec, -1')
    record(1)
    a('s_setpc_b64 %s' % RET_K)

    a.label('L_eval')
    gelu_consts(44)
    a('s_add_u32 s76, s76, %d' % (cfg.ELO * 512))
    a('s_lshl_b32 s77, s76, 30')
    a('s_and_b32 s77, s77, 0x80000000')
    a('s_lshr_b32 s76, s76, 2')
    a('s_lshl_b32 s76, s76, 16')
    a('s_or_b32 s76, s76, s77')
    a('v_mov_b32 v30, s76')
    a('v_mov_b32 v32, 0')
    a('v_lshlrev_b32 v31, 2, v0')
    a('s_mov_b32 s81, 0')
    a.label('L_ev')
    a('global_load_dword v33, v31, %s' % S_W1)
    a('global_load_dword v34, v31, %s' % S_B1)
    a('global_load_dword v35, v31, %s' % S_W2)
    wait_loads(3)
    a('v_lshlrev_b32 v36, 16, v33')
    a('v_and_b32 v37, 0xffff0000, v33')
    a('v_lshlrev_b32 v38, 16, v34')
    a('v_and_b32 v39, 0xffff0000, v34')
    gelu_pairs('v[30:31]', [36], [38], [35], [40], [42], [32, 32], 44, False)
    a('v_add_u32 v31, 256, v31')
    a('s_add_u32 s81, s81, 1')
    a('s_cmp_lt_u32 s81, 14')
    a('s_cbranch_scc1 L_ev')
    mix_finish([32], 's76')
    a('s_setpc_b64 %s' % RET_F)

    def head(par):
        a.label('L_head%d' % par)
        H = [par * 7 + k for k in range(7)]
        a('v_and_b32 v10, 1, v0')
        a('v_and_b32 v11, 48, v0')
        a('v_lshl_add_u32 v10, v10, 9, v11')
        a('s_lshl_b32 %s, %s, 10' % (sU[0], sPASS))
        a('s_add_u32 %s, %s, %d' % (sU[0], sU[0], L_QS))
        a('v_add_u32 v10, %s, v10' % sU[0])
        for s in range(4): a('ds_read_b128 %s, v10 offset:%d' % (vr(28 + 4 * s, 4), 64 * s))
        for s in range(8):
            a('s_waitcnt lgkmcnt(%d)' % (3 if s < 5 else 7 - s))
            f = 28 + 4 * (s & 3)
            for t in range(4):
                acc = vr(12 + 4 * t, 4)
                a('v_mfma_f32_16x16x32_bf16 %s, %s, %s, %s' % (acc, hreg(H[t], 4 * s, 4), vr(f, 4), '0' if s == 0 else acc))
            if s < 4: a('ds_read_b128 %s, v10 offset:%d' % (vr(f, 4), 64 * (s + 4)))
            if s in (1, 3, 5): quick()
        Ln = NL('L_n')
        a('s_cmp_eq_u32 %s, 0' % sPASS)
        a.nofence('s_cbranch_scc1 %s' % Ln)
        set_lim('s_lshl3_add_u32 %s, %s, 20' % (sLIM, sB))
        a.label(Ln)
        rkick()
        service()
        a('s_branch L_soft')
    head(0)
    head(1)
    a.label('L_soft')
    S = vl(12, 28)
    a('v_max3_f32 v10, v12, v13, v14')
    a('v_max3_f32 v11, v15, v16, v17')
    a('v_max3_f32 v10, v10, v18, v19')
    a('v_max3_f32 v11, v11, v20, v21')
    a('v_max3_f32 v10, v10, v22, v23')
    a('v_max3_f32 v11, v11, v24, v25')
    a('v_max3_f32 v10, v10, v26, v27')
    a('v_max_f32 v10, v10, v11')
    xrow('v_max_f32', ['v10'], ['v11'])
    a('v_mul_f32 v10, %s, v10' % sC)
    for s in S: a('v_fma_f32 %s, %s, %s, -v10' % (s, s, sC))
    quick()
    for s in S: a('v_exp_f32 %s, %s' % (s, s))
    quick()
    for t in range(4):
        a('v_cvt_pk_bf16_f32 v%d, v%d, v%d' % (28 + 2 * t, 12 + 4 * t, 13 + 4 * t))
        a('v_cvt_pk_bf16_f32 v%d, v%d, v%d' % (29 + 2 * t, 14 + 4 * t, 15 + 4 * t))
    for i in range(0, 8, 2): a('v_pk_add_f32 %s, %s, %s' % (vr(12 + i, 2), vr(12 + i, 2), vr(20 + i, 2)))
    for i in range(0, 4, 2): a('v_pk_add_f32 %s, %s, %s' % (vr(12 + i, 2), vr(12 + i, 2), vr(16 + i, 2)))
    a('v_pk_add_f32 v[12:13], v[12:13], v[14:15]')
    a('v_add_f32 v11, v12, v13')
    xrow('v_add_f32', ['v11'], ['v12'])
    quick()
    a('s_setpc_b64 %s' % RET_A)

    items = [(kg, cg) for kg in range(4) for cg in range(4)]
    def tail(par, kind):
        a.label('L_tail%s%d' % (kind, par))
        H = [par * 7 + k for k in range(7)]
        first = [True] * 4
        def pv(t, kg, cg, breg):
            acc = vr(12 + 4 * cg, 4)
            a('v_mfma_f32_4x4x4_16b_bf16 %s, %s, %s, %s cbsz:4 abid:%d' %
              (acc, vr(28 + 2 * t, 2), breg, '0' if first[cg] else acc, 4 * kg))
            first[cg] = False
        def reg_tile(t):
            for kg, cg in items: pv(t, kg, cg, hreg(H[4 + t], (kg * 4 + cg) * 2, 2))
            quick()
        def rd(i, reg):
            kg, cg = items[i]
            if i == 0:
                a('v_add_u32 v6, %d, %s' % (L_HOME + (par ^ 1) * 8192, vVA))
                a('v_xor_b32 v7, 128, v6')
            if i == 8:
                a('v_xor_b32 v6, 0x240, v6')
                a('v_xor_b32 v7, 0x240, v7')
            a('ds_read_b64_tr_b16 %s, v%d offset:%d' % (vr(reg, 2), 6 + (cg & 1), ((cg >> 1) ^ (kg & 1)) * 256 + kg * 2048))
        if kind == 'A':
            def wait_tile(k):
                Lw, Ld = NL('L_tw'), NL('L_td')
                a('s_lshl3_add_u32 %s, %s, %d' % (sU[0], sB, k + 1))
                a.label(Lw)
                a('s_cmp_ge_u32 %s, %s' % (sMOV, sU[0]))
                a.nofence('s_cbranch_scc1 %s' % Ld)
                Lq = NL('L_q')
                a('s_and_b32 %s, %s, 7' % (sT[0], sTMO))
                a.nofence('s_cbranch_scc1 %s' % Lq)
                rkick()
                a.label(Lq)
                service()
                tmo_check()
                a.nofence('s_branch %s' % Lw)
                a.label(Ld)
            a('s_waitcnt lgkmcnt(0)')
            for t in range(3):
                if 4 + t >= 8 - cfg.early: wait_tile(4 + t)
                reg_tile(t)
            rkick()
            if cfg.early: wait_tile(7)
            stamp(3)
            regs = [36, 38, 40, 42, 44, 46, 28, 30, 32]
            for i in range(9): rd(i, regs[i])
            for i in range(16):
                a('s_waitcnt lgkmcnt(%d)' % (9 + min(i, 7) - i - 1))
                kg, cg = items[i]
                pv(3, kg, cg, vr(regs[i % 9], 2))
                if i + 9 < 16: rd(i + 9, regs[i])
        else:
            rkick()
            for i in range(6): rd(i, 36 + 2 * i)
            def lds_group(lo, hi, nxt):
                a('s_waitcnt lgkmcnt(0)')
                for i in range(lo, hi):
                    kg, cg = items[i]
                    pv(3, kg, cg, vr(36 + 2 * (i - lo), 2))
                for j, i in enumerate(nxt): rd(i, 36 + 2 * j)
            reg_tile(0)
            lds_group(0, 6, range(6, 12))
            reg_tile(1)
            lds_group(6, 12, range(12, 16))
            reg_tile(2)
            lds_group(12, 16, [])
            set_lim('s_lshl3_add_u32 %s, %s, 24' % (sLIM, sB))
            rkick()
        a('s_branch L_comb')
    for par in range(2):
        tail(par, 'A')
        tail(par, 'B')

    a.label('L_comb')
    lds_wait(C_DONE, sNC, ['v28', 'v29'])
    a('s_add_u32 %s, %s, 1' % (sNC, sNC))
    a('s_lshl_b32 %s, %s, 11' % (sU[0], sW))
    a('s_add_u32 %s, %s, %d' % (sU[0], sU[0], L_COMB))
    a('v_lshl_add_u32 v28, v0, 2, %s' % sU[0])
    for cg in range(4):
        a('ds_write2st64_b32 v28, v%d, v%d offset0:%d offset1:%d' % (12 + 4 * cg, 13 + 4 * cg, cg, 4 + cg))
    a('s_lshl_b32 %s, %s, 4' % (sU[1], sW))
    a('v_lshl_add_u32 v29, v0, 3, %s' % sU[1])
    a('s_mov_b64 exec, 3')
    a('ds_write_b64 v29, v[10:11] offset:%d' % L_ML)
    a('s_mov_b64 exec, -1')
    last_arriver(C_COMB, 'L_comb_done', ['v28', 'v29'])
    a('v_lshrrev_b32 v11, 5, v0')
    a('v_lshlrev_b32 v46, 3, v11')
    a('v_lshlrev_b32 v10, 4, v0')
    a('v_add_u32 v10, %d, v10' % L_COMB)
    for w in range(4): a('ds_read_b64 %s, v46 offset:%d' % (vr(12 + 2 * w, 2), L_ML + 16 * w))
    for w in range(4): a('ds_read_b128 %s, v10 offset:%d' % (vr(20 + 4 * w, 4), 2048 * w))
    a('s_and_b32 %s, %s, 1' % (sU[0], sB))
    a('s_lshl1_add_u32 %s, %s, %s' % (sU[0], sPASS, sU[0]))
    a('s_mul_i32 %s, %s, 0x%x' % (sU[0], sU[0], OB_SET))
    a('s_mul_i32 %s, %s, 2560' % (sU[1], sWG))
    a('s_add_u32 %s, %s, %s' % (sU[0], sU[0], sU[1]))
    a('v_lshrrev_b32 v47, 2, v0')
    a('v_mul_u32_u24 v47, 80, v47')
    a('v_and_b32 v46, 3, v0')
    a('v_lshl_add_u32 v47, v46, 4, v47')
    a('s_waitcnt lgkmcnt(4)')
    a('v_max3_f32 v44, v12, v14, v16')
    a('v_max_f32 v44, v44, v18')
    for w in range(4): a('v_sub_f32 v%d, v%d, v44' % (12 + 2 * w, 12 + 2 * w))
    for w in range(4): a('v_exp_f32 v%d, v%d' % (12 + 2 * w, 12 + 2 * w))
    a('v_mul_f32 v45, v12, v13')
    for w in range(1, 4): a('v_fmac_f32 v45, v%d, v%d' % (12 + 2 * w, 13 + 2 * w))
    a('v_rcp_f32 v46, v45')
    a('v_log_f32 v45, v45')
    for w in range(4): a('v_mul_f32 v%d, v%d, v46' % (12 + 2 * w, 12 + 2 * w))
    a('v_add_f32 v44, v44, v45')
    for w in range(4): a('v_mov_b32 v%d, v%d' % (13 + 2 * w, 12 + 2 * w))
    a('v_and_b32 v46, 15, v0')
    a('v_lshl_add_u32 v46, v11, 4, v46')
    for w in range(4): a('v_permlane32_swap_b32 v%d, v%d' % (12 + 2 * w, 13 + 2 * w))
    a('v_mul_u32_u24 v46, 80, v46')
    a('v_bfi_b32 v44, -16, v44, %s' % sTAG)
    for half in range(2):
        a('s_waitcnt lgkmcnt(0)')
        o = 36 + 4 * half
        sel = 'op_sel_hi:[1,0]' if half == 0 else 'op_sel:[0,1] op_sel_hi:[1,1]'
        sel3 = 'op_sel_hi:[1,0,1]' if half == 0 else 'op_sel:[0,1,0] op_sel_hi:[1,1,1]'
        for c in (0, 2): a('v_pk_mul_f32 %s, %s, v[12:13] %s' % (vr(o + c, 2), vr(20 + c, 2), sel))
        for w in range(1, 4):
            for c in (0, 2): a('v_pk_fma_f32 %s, %s, %s, %s %s' % (vr(o + c, 2), vr(20 + 4 * w + c, 2), vr(12 + 2 * w, 2), vr(o + c, 2), sel3))
        if half == 0:
            for w in range(4): a('ds_read_b128 %s, v10 offset:%d' % (vr(20 + 4 * w, 4), 2048 * w + 1024))
            a('v_mov_b32 v10, %d' % (L_CNT + 4 * C_DONE))
            a('v_mov_b32 v11, %s' % sNC)
            a('ds_write_b32 v10, v11')
        for c in range(4): a('v_bfi_b32 v%d, -16, v%d, %s' % (o + c, o + c, sTAG))
    lstore('buffer_store_dwordx4 v[36:39], v47, %s, %s offen' % (SRD_W, sU[0]),
           'buffer_store_dwordx4 v[40:43], v47, %s, %s offen offset:1280' % (SRD_W, sU[0]),
           's_mov_b32 exec_lo, 0xffff', 's_mov_b32 exec_hi, 0xffff',
           'buffer_store_dword v44, v46, %s, %s offen offset:64' % (SRD_W, sU[0]))
    a('s_mov_b64 exec, -1')
    a.label('L_comb_done')
    a('s_setpc_b64 %s' % RET_A)
    flush_stubs()

    G, D = cfg.G, cfg.D
    NG = 8 // G
    def yield_to_main(): a.nofence('s_swappc_b64 %s, %s' % (sNEXT, RET_S))
    def issue_group(i):
        n = (i // NG) & 15
        par, k = n >> 3, n & 7
        base = (L_HOME if k == 7 else 0) + ((k ^ par) & 1) * 8192
        if k == 0 and i % NG == 0 and i > 0: a('s_add_u32 %s, %s, 0x2000000' % (sTB, sTB))
        for j in range(G):
            jj = (i % NG) * G + j
            x = (k & 3) * 0x8000 + jj * (0x1020 if k < 4 else 0x1080)
            a('s_add_u32 m0, %s, %d' % (sRING, base + jj * 1024))
            a('v_xor_b32 v3, 0x%x, %s' % (x, vBK if k < 4 else vBV))
            a('buffer_load_dwordx4 v3, %s, %s offen nt lds' % (SRD_K if k < 4 else SRD_V, sTB))
        a('s_add_u32 %s, %s, %d' % (sOPS, sOPS, G))
        a('s_mov_b32 %s, %s' % (sSQ[min(i, D - 1)], sOPS))
    def start_move(m):
        n = m & 15
        par, k = n >> 3, n & 7
        if k == 7:
            a('s_add_u32 %s, %s, 1' % (sMOV, sMOV)); return
        hidx = par * 7 + k
        slot = ((k ^ par) & 1) * 8192
        if k in (0, 4):
            Lr, Lg = NL('L_hr'), NL('L_hg')
            a.label(Lr)
            a('s_cmp_lt_u32 %s, %s' % (sMOV, sLIM))
            a('s_cselect_b32 %s, 0, 1' % sBLK)
            a('s_cbranch_scc1 %s' % Lg)
            a('s_mov_b32 %s, %d' % (sVW, NEVER))
            yield_to_main()
            a('s_branch %s' % Lr)
            a.label(Lg)
        if k < 4:
            for x in range(4):
                if x: a('v_xor_b32 v3, %d, %s' % (64 * x, vKA))
                for st in (x, x + 4):
                    a('ds_read_b128 %s, %s offset:%d' % (hreg(hidx, 4 * st, 4), 'v3' if x else vKA, slot + (st >> 2) * 256))
        else:
            for x, xv in enumerate((0, 128, 0x240, 0x2c0)):
                if x: a('v_xor_b32 v3, 0x%x, %s' % (xv, vVA))
                for kg in range(4):
                    for cg in range(4):
                        if (cg & 1) + 2 * (kg >> 1) != x: continue
                        a('ds_read_b64_tr_b16 %s, %s offset:%d' % (hreg(hidx, (kg * 4 + cg) * 2, 2), 'v3' if x else vVA,
                                                                   slot + ((cg >> 1) ^ (kg & 1)) * 256 + kg * 2048))
    def finish_move():
        a('s_waitcnt lgkmcnt(0)')
        a('s_add_u32 %s, %s, 1' % (sMOV, sMOV))
    DL = max(0, NG - D)
    def started_at(i):
        for dl in (0, DL):
            g = i - D - dl
            if g >= 0 and g % NG == NG - 1:
                m = g // NG
                if (dl == DL) == (((m & 7) == 0) or DL == 0): return m
        return None
    def pop():
        a('s_sub_u32 %s, %s, %s' % (sVW, sOPS, sSQ[0]))
        a('s_cmp_ge_i32 %s, %s' % (sDONE, sSQ[0]))
        for j in range(D - 1): a('s_mov_b32 %s, %s' % (sSQ[j], sSQ[j + 1]))
    def step(i, issue=True, last=False):
        pm = started_at(i - 1)
        if pm is not None and (pm & 7) != 7: finish_move()
        if issue: issue_group(i)
        m = started_at(i)
        if m is not None: start_move(m)
        if last:
            a('s_mov_b32 %s, %d' % (sVW, NEVER))
            yield_to_main()
            return
        L = NL('L_due')
        pop()
        a.nofence('s_cbranch_scc1 %s' % L)
        yield_to_main()
        a.label(L)
    PER = 16 * NG
    a.label('L_st_start')
    for i in range(D): issue_group(i)
    pop()
    yield_to_main()
    step(D)
    a('s_branch L_st_%d' % (D + 1))
    a.label('L_st_loop')
    for i in range(PER, 2 * PER):
        a.label('L_st_%d' % (i - PER))
        step(i)
    a('s_cmp_lt_u32 %s, 56' % sMOV)
    a('s_cbranch_scc1 L_st_loop')
    for i in range(PER, PER + D): step(i, issue=False, last=(i == PER + D - 1))
    a('s_branch L_exit')

    a.raw('.section .rodata,"a"')
    a.raw('.p2align 6')
    a.raw('.amdhsa_kernel %s_kernel' % NAME)
    a.raw('  .amdhsa_next_free_vgpr 512')
    a.raw('  .amdhsa_next_free_sgpr %d' % NSGPR)
    a.raw('  .amdhsa_accum_offset 256')
    a.raw('  .amdhsa_group_segment_fixed_size 0')
    a.raw('  .amdhsa_kernarg_size 104')
    a.raw('  .amdhsa_user_sgpr_count 2')
    a.raw('  .amdhsa_user_sgpr_kernarg_segment_ptr 1')
    a.raw('  .amdhsa_system_sgpr_workgroup_id_x 1')
    a.raw('  .amdhsa_float_denorm_mode_32 3')
    a.raw('.end_amdhsa_kernel')
    return a

if __name__ == '__main__':
    cfg = Cfg()
    out = 'cdna_kernels/%s.s' % NAME
    for arg in sys.argv[1:]:
        k, val = arg.split('=')
        if k == 'out': out = val
        else: setattr(cfg, k, int(val))
    a = gen(cfg)
    open(out, 'w').write(a.text())
    print('wrote', out, a.count, 'instructions')
```

```python
import re

_REG = re.compile(r'^(-|\|)?(?:abs\()?([vas])(?:(\d+)|\[(\d+):(\d+)\])\)?\|?$')

def regs_of(tok):
    t = tok.strip()
    if t in ('vcc',): return {('s', 106), ('s', 107)}
    if t == 'vcc_lo': return {('s', 106)}
    if t == 'vcc_hi': return {('s', 107)}
    if t == 'exec': return {('s', 126), ('s', 127)}
    if t == 'exec_lo': return {('s', 126)}
    if t == 'exec_hi': return {('s', 127)}
    if t == 'm0': return {('s', 124)}
    m = _REG.match(t)
    if not m: return set()
    f = m.group(2)
    if m.group(3) is not None:
        return {(f, int(m.group(3)))}
    return {(f, i) for i in range(int(m.group(4)), int(m.group(5)) + 1)}

def split_ops(s):
    ops, depth, cur = [], 0, ''
    for ch in s + ',':
        if ch in '[(': depth += 1
        elif ch in '])': depth -= 1
        if ch == ',' and depth == 0:
            ops.append(cur.strip()); cur = ''
        else: cur += ch
    return [o for o in ops if o]

TRANS = ('v_exp_f32', 'v_log_f32', 'v_rcp_f32', 'v_rsq_f32', 'v_sqrt_f32', 'v_sin_f32', 'v_cos_f32')
VCC = {('s', 106), ('s', 107)}

class Insn:
    def __init__(self, text):
        self.text = text
        parts = text.split(None, 1)
        self.mn = parts[0]
        rest = parts[1] if len(parts) > 1 else ''
        raw = split_ops(rest)
        self.mods = []
        ops = []
        for o in raw:
            p = o.split()
            ops.append(p[0]); self.mods += p[1:]
        self.ops = ops
        mn = self.mn
        self.is_mfma = mn.startswith('v_mfma')
        self.is_valu = mn.startswith('v_') and not self.is_mfma
        self.is_salu = mn.startswith('s_')
        self.is_ds = mn.startswith('ds_')
        self.is_vmem = mn.startswith(('buffer_', 'global_', 'flat_'))
        self.is_dpp = any(m.startswith(('quad_perm', 'row_', 'wave_')) for m in self.mods) or mn.endswith('_dpp')
        self.is_trans = mn.replace('_e32', '').replace('_e64', '') in TRANS
        self.is_dot = mn.startswith('v_dot')
        self.is_perml = mn.startswith('v_permlane')
        self.is_rdlane = mn.startswith(('v_readlane', 'v_readfirstlane'))
        self.is_wrlane = mn.startswith('v_writelane')
        self.lds_dma = self.is_vmem and ('lds' in self.mods or '_lds_' in mn)
        w, r = set(), set()
        R = [regs_of(o) for o in ops]
        self.srcC = set(); self.srcAB = set(); self.lanesel = set(); self.store_data = set()
        if self.is_mfma:
            w |= R[0]; self.srcAB = R[1] | R[2]; self.srcC = R[3]; r |= self.srcAB | self.srcC
            if '4x4x4' in mn: self.passes = 2
            elif '16x16x32' in mn or '16x16x16' in mn: self.passes = 4
            elif '32x32x16' in mn or '32x32x8' in mn: self.passes = 8
            else: raise ValueError(mn)
        elif self.is_valu:
            if mn.startswith('v_cmp'):
                w |= R[0]
                for x in R[1:]: r |= x
            elif self.is_perml and 'swap' in mn:
                w |= R[0] | R[1]; r |= R[0] | R[1]
            elif mn.startswith(('v_add_co', 'v_sub_co', 'v_addc_co', 'v_subb_co', 'v_subrev_co')):
                w |= R[0] | R[1]
                for x in R[2:]: r |= x
            else:
                w |= R[0]
                for x in R[1:]: r |= x
                if mn.startswith(('v_fmac', 'v_dot2c', 'v_pk_fmac')) or self.is_wrlane or self.is_dpp: r |= R[0]
                if mn.startswith('v_cndmask') and len(ops) == 3: r |= VCC
                if (self.is_rdlane or self.is_wrlane) and len(ops) == 3: self.lanesel = R[2]
        elif self.is_ds:
            if mn.startswith(('ds_read', 'ds_bpermute', 'ds_permute', 'ds_swizzle')) or '_rtn' in mn:
                w |= R[0]
                for x in R[1:]: r |= x
            else:
                for x in R: r |= x
        elif self.is_vmem:
            if self.lds_dma:
                for x in R: r |= x
                r |= {('s', 124)}
            elif '_load' in mn:
                w |= R[0]
                for x in R[1:]: r |= x
            else:
                for x in R: r |= x
                if mn.startswith('buffer_store'): d = R[0]
                elif mn.startswith('global_store'): d = R[1]
                else: d = set()
                if len(d) >= 3: self.store_data = d
                if 'atomic' in mn and 'sc0' in self.mods: w |= R[0]
        elif self.is_salu:
            if mn.startswith(('s_cmp', 's_cbranch', 's_branch', 's_waitcnt', 's_nop', 's_barrier', 's_endpgm',
                              's_setpc', 's_sleep', 's_setprio', 's_bitcmp')):
                for x in R: r |= x
            else:
                if R: w |= R[0]
                for x in R[1:]: r |= x
                if 'saveexec' in mn: w |= regs_of('exec')
        self.w, self.r = w, r
        self.states = 1
        if mn == 's_nop': self.states = int(ops[0], 0) + 1

def vg(s): return {x for x in s if x[0] in 'va'}
def sg(s): return {x for x in s if x[0] == 's'}

def need(p, c):
    n = 0
    if p.is_valu:
        pv, ps = vg(p.w), sg(p.w)
        if pv:
            if c.is_valu and c.is_dpp and pv & c.r: n = max(n, 2)
            if c.is_rdlane and pv & c.r: n = max(n, 1)
            if c.is_perml and pv & c.r: n = max(n, 2)
            if c.is_mfma and pv & c.r: n = max(n, 2)
            if p.is_trans and (c.is_valu or c.is_mfma) and pv & c.r: n = max(n, 1)
            if p.is_trans and (c.is_vmem or c.is_ds) and pv & c.r: n = max(n, 1)
            if p.is_dot and (pv & (c.r | c.w)):
                same_acc = c.is_dot and c.mn == p.mn and not (pv & (regs_of(c.ops[1]) | regs_of(c.ops[2])))
                if not same_acc: n = max(n, 3)
        if ps:
            if c.is_valu and ps & c.r: n = max(n, 2)
            if ps & c.lanesel: n = max(n, 4)
            if c.is_vmem and ps & c.r: n = max(n, 5)
            if c.is_salu and ps & c.r: n = max(n, 1)
    if p.is_mfma:
        big = {2: 5, 4: 8, 8: 12}[p.passes]
        if c.is_mfma:
            if p.w & c.srcAB: n = max(n, big)
            if p.w & c.srcC:
                if p.w == c.srcC and p.passes == c.passes: n = max(n, 2 if p.passes == 2 else 0)
                else: n = max(n, {2: 4, 4: 6, 8: 10}[p.passes])
            elif p.w & c.w: n = max(n, big)
        elif (c.is_valu or c.is_vmem or c.is_ds) and p.w & (c.r | c.w): n = max(n, big)
        if c.is_valu and p.srcC & c.w: n = max(n, {2: 1, 4: 3, 8: 7}[p.passes])
    if p.store_data and p.store_data & c.w: n = max(n, 2)
    if p.is_salu and ('s', 124) in p.w and c.lds_dma: n = max(n, 1)
    return n

def worst(p):
    if p.is_mfma: return {2: 5, 4: 8, 8: 12}[p.passes]
    if p.is_valu:
        if sg(p.w): return 5
        if p.is_dot: return 3
        return 2
    if p.store_data: return 2
    if p.is_salu and ('s', 124) in p.w: return 1
    return 0

class Asm:
    def __init__(self):
        self.lines = []
        self.hist = []
        self.nlab = 0
        self.count = 0
        self.inject = None
        self.acc = 0
        self._in = False
    def _push(self, ins):
        self.hist = [(p, d + ins.states) for p, d in self.hist if d + ins.states < 16]
        self.hist.append((ins, 0))
        self.lines.append('    ' + ins.text)
        self.count += 1
    def nop(self, n):
        while n > 0:
            k = min(n, 16)
            self._push(Insn('s_nop %d' % (k - 1))); n -= k
    def fence(self):
        n = 0
        for p, d in self.hist: n = max(n, worst(p) - d)
        self.nop(n)
    def __call__(self, text):
        for line in text.strip().split('\n'):
            line = line.split(';')[0].strip()
            if not line: continue
            ins = Insn(line)
            if self.inject and not self._in:
                if self.acc >= self.inject[1] and (ins.is_valu or ins.is_mfma or ins.is_ds):
                    self._in = True
                    self.inject[0]()
                    self._in = False
                    self.acc = 0
                self.acc += 4 * ins.passes if ins.is_mfma else (8 if (ins.is_trans or ins.is_perml) else 4 * ins.states)
            if ins.mn.startswith(('s_cbranch', 's_branch', 's_call', 's_setpc', 's_swappc')):
                n = 0
                for p, d in self.hist: n = max(n, worst(p) - d - 1)
                self.nop(n)
            n = 0
            for p, d in self.hist: n = max(n, need(p, ins) - d)
            self.nop(n)
            self._push(ins)
    def nofence(self, text):
        ins = Insn(text)
        n = 0
        for p, d in self.hist: n = max(n, need(p, ins) - d)
        self.nop(n)
        self._push(ins)
    def label(self, name):
        self.lines.append(name + ':')
    def newlabel(self, stem='L'):
        self.nlab += 1
        return '%s_%d' % (stem, self.nlab)
    def comment(self, s):
        self.lines.append('    ; ' + s)
    def raw(self, s):
        self.lines.append(s)
    def text(self):
        return '\n'.join(self.lines) + '\n'
```

```python
import sys, struct
from asmlib import Asm

NAME = "interleave_layers__gqa_block_cached__mixer_token_mlp__decode"
HEADER = open('cdna_kernels/%s.s.ref' % NAME).read().split('; Override launch')[0]

def f32(x): return '0x%08x' % struct.unpack('<I', struct.pack('<f', x))[0]

class Cfg:
    D = 3
    stamps = 0
    ELO = 111
    force_global = 0
    tmo = 2000000
    dX = 4
    npre = 2
    QT = 7
    bpre = 3

OB_OFF, OB_SET = 0x0, 0x90000
YL_OFF, YL_SET = 0x120000, 0x80000
QB_OFF = 0x220000
XP_OFF = 0x260000
TB_OFF = 0x2A0000
XS_OFF = 0x2A8000
XDBG_OFF = 0x2B0000
DBG_OFF = 0x400000
WS_OFF = 0x800000
WS_BYTES = 0x1000000
L_TBL = 0
L_ML = 10240
L_MBO = L_ML + 64
L_MX = L_MBO + 128
L_QP = L_MX + 128
L_MISC = L_QP + 512
L_NST = 11264
L_QS = 12288
L_COMB = 14336
L_Q1 = 22528
L_RING = 26624
SLOT = [0, 1, 0, 1, 2, 3, 0, 1, 2, 3, 0, 1, 0, 1, 2, 3]
LDS_BYTES = L_RING + 131072
assert L_MISC + 64 <= L_NST

S_X, S_K, S_V, S_WQ, S_WO, S_W1, S_B1, S_W2, S_B2, S_OUT, S_DBG, S_WS = \
    's[16:17]', 's[18:19]', 's[20:21]', 's[22:23]', 's[24:25]', 's[28:29]', 's[30:31]', 's[32:33]', 's[34:35]', 's[36:37]', 's[38:39]', 's[40:41]'
SRD_K, SRD_V, SRD_W = 's[4:7]', 's[8:11]', 's[12:15]'
sFIN, sXCC = 's26', 's27'
sW, sH, sSP, sWG, sGRP = 's42', 's43', 's44', 's45', 's46'
sTB, sRING, sWS, sLOC = 's47', 's48', 's49', 's50'
sOREC, sYREC, sSLOT = 's51', 's52', 's53'
sB, sTAG, sTMO, sB2V, sC, sPASS, sXN = 's54', 's55', 's56', 's57', 's58', 's59', 's60'
RET_A, RET_F = 's[62:63]', 's[64:65]'
sSTAMP, sSTO = 's[66:67]', 's68'
sU = ['s%d' % i for i in range(76, 92)]
NSGPR = 92
vBK, vBV, vKA, vVA = 'v1', 'v2', 'v4', 'v5'

def home(idx):
    return ('a', idx * 32) if idx < 8 else ('v', 64 + (idx - 8) * 32)
def hreg(idx, off, n):
    f, b = home(idx)
    return '%s[%d:%d]' % (f, b + off, b + off + n - 1)
def vr(i, n): return 'v[%d:%d]' % (i, i + n - 1)
def vl(lo, hi): return ['v%d' % i for i in range(lo, hi)]

def gen(cfg):
    a = Asm()
    a.raw(HEADER.rstrip())
    a.raw('; @launch grid=(256,1,1) block=(256,1,1) lds=%d' % LDS_BYTES)
    a.raw('.amdgcn_target "amdgcn-amd-amdhsa--gfx950"')
    a.raw('.text')
    a.raw('.globl %s_kernel' % NAME)
    a.raw('.p2align 8')
    a.raw('.type %s_kernel,@function' % NAME)
    a.label('%s_kernel' % NAME)
    DPP = 'row_mask:0xf bank_mask:0xf'
    NL = a.newlabel

    def stamp(ev):
        if not cfg.stamps: return
        a('s_memrealtime %s' % sSTAMP)
        a('s_lshl_b32 %s, %s, 7' % (sU[15], sB))
        a('s_add_u32 %s, %s, %s' % (sU[15], sU[15], sSTO))
        a('s_waitcnt lgkmcnt(0)')
        a('v_mov_b32 v3, s66')
        a('s_mov_b64 exec, 1')
        a('buffer_store_dword v3, v0, %s, %s offen offset:%d' % (SRD_W, sU[15], 4 * ev))
        a('s_mov_b64 exec, -1')
    def tmo_check():
        a('s_sub_u32 %s, %s, 1' % (sTMO, sTMO))
        a('s_cbranch_scc1 L_exit')
    def barrier():
        a('s_waitcnt lgkmcnt(0)')
        a('s_barrier')
    def tagcheck(regs, tag, tmp, mask=15):
        a('v_xor_b32 %s, %s, %s' % (tmp, tag, regs[0]))
        for r in regs[1:]:
            a('v_bitop3_b32 %s, %s, %s, %s bitop3:0xf6' % (tmp, tmp, r, tag))
        a('v_and_b32 %s, %d, %s' % (tmp, mask, tmp))
        a('v_cmp_ne_u32 vcc, 0, %s' % tmp)
    def poll(issue, regs, tag, tmp, mask=15):
        Lr = NL('L_pr')
        a.label(Lr)
        issue()
        tmo_check()
        a('s_waitcnt vmcnt(0)')
        tagcheck(regs, tag, tmp, mask)
        a.nofence('s_cbranch_vccnz %s' % Lr)
    def lstore(*texts):
        Lg, Le = NL('L_g'), NL('L_e')
        a('s_cmp_eq_u32 %s, 0' % sLOC)
        a('s_cbranch_scc1 %s' % Lg)
        for t in texts: a(t)
        a('s_branch %s' % Le)
        a.label(Lg)
        for t in texts: a(t + ' sc1' if t.startswith('buffer') else t)
        a.label(Le)
    def only_wave(w, Lskip):
        a('s_cmp_lg_u32 %s, %d' % (sW, w))
        a('s_cbranch_scc1 %s' % Lskip)

    STEPS = ['quad_perm:[1,0,3,2] ' + DPP, 'quad_perm:[2,3,0,1] ' + DPP, 'row_half_mirror ' + DPP, 'row_mirror ' + DPP,
             'row_bcast:15 row_mask:0xa bank_mask:0xf', 'row_bcast:31 row_mask:0xc bank_mask:0xf']
    ROR8 = 'row_ror:8 ' + DPP
    def wave_sum(regs, nsteps=6):
        for m in STEPS[:nsteps]:
            for r in regs: a('v_add_f32_dpp %s, %s, %s %s' % (r, r, r, m))
    def xrow(op, regs, temps, swaps=('v_permlane16_swap_b32', 'v_permlane32_swap_b32')):
        for sw in swaps:
            for r, t in zip(regs, temps): a('v_mov_b32 %s, %s' % (t, r))
            for r, t in zip(regs, temps): a('%s %s, %s' % (sw, r, t))
            for r, t in zip(regs, temps): a('%s %s, %s, %s' % (op, r, r, t))
    def bf16r(regs):
        n = len(regs)
        for i in range(0, n - 1, 2): a('v_cvt_pk_bf16_f32 %s, %s, %s' % (regs[i + 1], regs[i], regs[i + 1]))
        for i in range(0, n - 1, 2):
            a('v_lshlrev_b32 %s, 16, %s' % (regs[i], regs[i + 1]))
            a('v_and_b32 %s, 0xffff0000, %s' % (regs[i + 1], regs[i + 1]))
        if n & 1:
            x = regs[-1]
            a('v_cvt_pk_bf16_f32 %s, %s, %s' % (x, x, x))
            a('v_lshlrev_b32 %s, 16, %s' % (x, x))
    def ln_finish(mean, var, mb, r):
        a('v_cvt_pk_bf16_f32 %s, %s, %s' % (r, mean, var))
        a('v_lshlrev_b32 %s, 16, %s' % (mb, r))
        a('v_and_b32 %s, 0xffff0000, %s' % (r, r))
        a('v_add_f32 %s, %s, %s' % (r, f32(1e-5), r))
        bf16r([r])
        a('v_sqrt_f32 %s, %s' % (r, r))
        bf16r([r])
        a('v_rcp_f32 %s, %s' % (r, r))
    def ln_vec(src, dst, n, mb, final_round=True):
        for c in range(0, n, 2): a('v_pk_add_f32 %s, %s, %s op_sel_hi:[1,0] neg_lo:[0,1] neg_hi:[0,1]' % (vr(dst + c, 2), vr(src + c, 2), vr(mb, 2)))
        bf16r(vl(dst, dst + n))
        for c in range(0, n, 2): a('v_pk_mul_f32 %s, %s, %s op_sel:[0,1] op_sel_hi:[1,1]' % (vr(dst + c, 2), vr(dst + c, 2), vr(mb, 2)))
        if final_round: bf16r(vl(dst, dst + n))
    K0 = -2.0 * 0.7978845608028654 * 1.4426950408889634
    def gelu_consts(kv):
        a('s_mov_b32 s82, %s' % f32(K0 * 0.044715))
        a('s_mov_b32 s83, s82')
        a('v_mov_b32 v%d, %s' % (kv, f32(K0)))
        a('v_mov_b32 v%d, v%d' % (kv + 1, kv))
    def gelu_pairs(hreg2, W1, B1, W2, U, Z, acc, kv, first):
        n = len(W1)
        def rnd():
            for i in range(n): a('v_cvt_pk_bf16_f32 v%d, v%d, v%d' % (U[i] + 1, U[i], U[i] + 1))
            for i in range(n): a('v_lshlrev_b32 v%d, 16, v%d' % (U[i], U[i] + 1))
            for i in range(n): a('v_and_b32 v%d, 0xffff0000, v%d' % (U[i] + 1, U[i] + 1))
        for i in range(n): a('v_pk_mul_f32 %s, %s, %s op_sel_hi:[0,1]' % (vr(U[i], 2), hreg2, vr(W1[i], 2)))
        rnd()
        for i in range(n): a('v_pk_add_f32 %s, %s, %s' % (vr(U[i], 2), vr(U[i], 2), vr(B1[i], 2)))
        rnd()
        for i in range(n): a('v_pk_mul_f32 %s, %s, %s' % (vr(Z[i], 2), vr(U[i], 2), vr(U[i], 2)))
        for i in range(n): a('v_pk_fma_f32 %s, %s, s[82:83], %s' % (vr(Z[i], 2), vr(Z[i], 2), vr(kv, 2)))
        for i in range(n): a('v_pk_mul_f32 %s, %s, %s' % (vr(Z[i], 2), vr(Z[i], 2), vr(U[i], 2)))
        for i in range(n):
            for e in range(2): a('v_exp_f32 v%d, v%d' % (Z[i] + e, Z[i] + e))
        for i in range(n): a('v_pk_add_f32 %s, %s, 1.0 op_sel_hi:[1,0]' % (vr(Z[i], 2), vr(Z[i], 2)))
        for i in range(n):
            for e in range(2): a('v_rcp_f32 v%d, v%d' % (Z[i] + e, Z[i] + e))
        for i in range(n): a('v_pk_mul_f32 %s, %s, %s' % (vr(U[i], 2), vr(U[i], 2), vr(Z[i], 2)))
        for i in range(n): a('v_cvt_pk_bf16_f32 v%d, v%d, v%d' % (U[i], U[i], U[i] + 1))
        for i in range(n):
            a('v_dot2_f32_bf16 v%d, v%d, v%d, %s' % (acc[i & 1], U[i], W2[i], '0' if (first and i < 2) else 'v%d' % acc[i & 1]))
    def mix_finish(acc, dst):
        if len(acc) > 1: a('v_add_f32 v%d, v%d, v%d' % (acc[0], acc[0], acc[1]))
        wave_sum(['v%d' % acc[0]])
        bf16r(['v%d' % acc[0]])
        a('v_add_f32 v%d, %s, v%d' % (acc[0], sB2V, acc[0]))
        bf16r(['v%d' % acc[0]])
        a('v_readlane_b32 %s, v%d, 63' % (dst, acc[0]))
    def slot_off(dst, base, b=sB):
        a('s_lshl_b32 %s, %s, 14' % (dst, b))
        a('s_add_u32 %s, %s, 0x%x' % (dst, dst, base))

    def issue_piece(n, jj, tb=sTB):
        k = n & 7
        x = k * 0x8000 + jj * (0x1020 if n < 8 else 0x1080)
        a('s_add_u32 m0, %s, %d' % (sRING, SLOT[n] * 8192 + jj * 1024))
        a('v_xor_b32 v3, 0x%x, %s' % (x, vBK if n < 8 else vBV))
        a('buffer_load_dwordx4 v3, %s, %s offen nt lds' % (SRD_K if n < 8 else SRD_V, tb))
    def issue_group(i, tb=sTB):
        for j in range(4): issue_piece(i >> 1, (i & 1) * 4 + j, tb)
    items = [(kg, cg) for kg in range(4) for cg in range(4)]
    def v_read(dst, kg, cg, slot, ad):
        a('ds_read_b64_tr_b16 %s, %s offset:%d' % (dst, ad[(cg & 1) + 2 * (kg >> 1)], slot * 8192 + ((cg >> 1) ^ (kg & 1)) * 256 + kg * 2048))
    def v_addrs():
        a('v_xor_b32 v6, 128, %s' % vVA)
        a('v_xor_b32 v7, 0x240, %s' % vVA)
        a('v_xor_b32 v8, 0x2c0, %s' % vVA)
        return [vVA, 'v6', 'v7', 'v8']
    def move(n):
        slot = SLOT[n]
        if n < 8:
            a('v_xor_b32 v6, 64, %s' % vKA)
            a('v_xor_b32 v7, 128, %s' % vKA)
            a('v_xor_b32 v8, 192, %s' % vKA)
            ad = [vKA, 'v6', 'v7', 'v8']
            for st in range(8):
                a('ds_read_b128 %s, %s offset:%d' % (hreg(n, 4 * st, 4), ad[st & 3], slot * 8192 + (st >> 2) * 256))
        else:
            ad = v_addrs()
            for kg, cg in items: v_read(hreg(n, (kg * 4 + cg) * 2, 2), kg, cg, slot, ad)

    S0, P0, ACC, VT = 12, 44, 12, 28
    QF = 64 + 5 * 32
    def q_addr(layer, reg):
        a('v_and_b32 %s, 1, v0' % reg)
        a('v_and_b32 v3, 48, v0')
        a('v_lshl_add_u32 %s, %s, 9, v3' % (reg, reg))
    def softmax():
        S = vl(S0, S0 + 32)
        a('v_max3_f32 v10, %s, %s, %s' % tuple(S[0:3]))
        a('v_max3_f32 v11, %s, %s, %s' % tuple(S[3:6]))
        for i in range(6, 30, 4):
            a('v_max3_f32 v10, v10, %s, %s' % (S[i], S[i + 1]))
            a('v_max3_f32 v11, v11, %s, %s' % (S[i + 2], S[i + 3]))
        a('v_max3_f32 v10, v10, %s, %s' % (S[30], S[31]))
        a('v_max_f32 v10, v10, v11')
        xrow('v_max_f32', ['v10'], ['v11'])
        a('v_mul_f32 v10, %s, v10' % sC)
        a('v_mov_b32 v60, %s' % sC)
        for i in range(0, 32, 2):
            a('v_pk_fma_f32 %s, %s, v[60:61], v[10:11] op_sel_hi:[1,0,0] neg_lo:[0,0,1] neg_hi:[0,0,1]' % (vr(S0 + i, 2), vr(S0 + i, 2)))
        for s in S: a('v_exp_f32 %s, %s' % (s, s))
        for i in range(16): a('v_cvt_pk_bf16_f32 v%d, v%d, v%d' % (P0 + i, S0 + 2 * i, S0 + 2 * i + 1))
        for n in (16, 8, 4, 2):
            for i in range(0, n, 2): a('v_pk_add_f32 %s, %s, %s' % (vr(S0 + i, 2), vr(S0 + i, 2), vr(S0 + n + i, 2)))
        a('v_add_f32 v11, v%d, v%d' % (S0, S0 + 1))
        xrow('v_add_f32', ['v11'], ['v%d' % S0])
    class PV:
        def __init__(self): self.first = [True] * 4
        def one(self, t, kg, cg, breg):
            acc = vr(ACC + 4 * cg, 4)
            a('v_mfma_f32_4x4x4_16b_bf16 %s, %s, %s, %s cbsz:4 abid:%d' %
              (acc, vr(P0 + 2 * t, 2), breg, '0' if self.first[cg] else acc, 4 * kg))
            self.first[cg] = False
        def reg_tile(self, t):
            for kg, cg in items: self.one(t, kg, cg, hreg(8 + t, (kg * 4 + cg) * 2, 2))
        def lds_tile(self, t):
            slot = SLOT[8 + t]
            ad = v_addrs()
            for i in range(8): v_read(vr(VT + 2 * i, 2), items[i][0], items[i][1], slot, ad)
            for i in range(16):
                a('s_waitcnt lgkmcnt(%d)' % (7 if i < 9 else 15 - i))
                self.one(t, items[i][0], items[i][1], vr(VT + 2 * (i & 7), 2))
                if i < 8: v_read(vr(VT + 2 * i, 2), items[i + 8][0], items[i + 8][1], slot, ad)

    a('s_cmp_ge_u32 s2, 256')
    a('s_cbranch_scc1 L_exit')
    a('s_load_dwordx16 s[16:31], s[0:1], 0')
    a('s_load_dwordx8 s[32:39], s[0:1], 64')
    a('s_load_dwordx2 s[40:41], s[0:1], 96')
    a('v_lshrrev_b32 v1, 6, v0')
    a('v_and_b32 v0, 63, v0')
    a('v_readfirstlane_b32 %s, v1' % sW)
    a('s_mov_b32 %s, s2' % sWG)
    a('s_and_b32 %s, s2, 7' % sH)
    a('s_bfe_u32 %s, s2, 0x40003' % sSP)
    a('s_lshr_b32 %s, s2, 7' % sGRP)
    a('v_lshrrev_b32 v6, 5, v0')
    a('v_and_b32 v7, 31, v0')
    a('v_xor_b32 v8, v7, v6')
    a('v_lshlrev_b32 v8, 4, v8')
    a('v_lshl_add_u32 %s, v6, 9, v8' % vBK)
    a('s_lshl_b32 %s, %s, 22' % (sTB, sH))
    a('s_lshl_b32 %s, %s, 18' % (sU[0], sSP))
    a('s_add_u32 %s, %s, %s' % (sTB, sTB, sU[0]))
    a('s_lshl_b32 %s, %s, 10' % (sU[0], sW))
    a('s_add_u32 %s, %s, %s' % (sTB, sTB, sU[0]))
    a('s_lshl_b32 %s, %s, 25' % (sU[0], sGRP))
    a('s_add_u32 %s, %s, %s' % (sTB, sTB, sU[0]))
    a('s_lshl_b32 %s, %s, 15' % (sRING, sW))
    a('s_add_u32 %s, %s, %d' % (sRING, sRING, L_RING))
    a('s_mov_b32 s10, 0x10000000')
    a('s_mov_b32 s11, 0x00020000')
    a('s_mov_b32 s6, 0x10000000')
    a('s_mov_b32 s7, 0x00020000')
    a('s_mov_b32 s14, 0x%x' % WS_BYTES)
    a('s_mov_b32 s15, 0x00020000')
    a('v_lshlrev_b32 v8, 2, v6')
    a('v_xor_b32 v8, v7, v8')
    a('v_lshlrev_b32 v8, 4, v8')
    a('v_lshl_add_u32 %s, v6, 9, v8' % vBV)
    a('v_and_b32 v6, 15, v0')
    a('v_lshrrev_b32 v7, 4, v0')
    a('v_xor_b32 v8, v6, v7')
    a('v_lshlrev_b32 v8, 4, v8')
    a('v_lshl_add_u32 %s, v6, 9, v8' % vKA)
    a('v_add_u32 %s, %s, %s' % (vKA, sRING, vKA))
    a('v_lshrrev_b32 v8, 2, v6')
    a('v_bfe_u32 v9, v0, 1, 1')
    a('v_lshl_add_u32 v9, v7, 1, v9')
    a('v_lshlrev_b32 v7, 2, v8')
    a('v_xor_b32 v9, v9, v7')
    a('v_lshlrev_b32 v9, 4, v9')
    a('v_lshl_add_u32 v9, v8, 9, v9')
    a('v_and_b32 v7, 1, v0')
    a('v_lshl_add_u32 %s, v7, 3, v9' % vVA)
    a('v_add_u32 %s, %s, %s' % (vVA, sRING, vVA))
    a('s_mov_b32 %s, %s' % (sB, sGRP))
    for r, val in ((sLOC, 0), (sTMO, cfg.tmo), (sXN, 0)):
        a('s_mov_b32 %s, %d' % (r, val))
    a('s_mov_b32 %s, %s' % (sC, f32(1.4426950408889634 / 16)))
    a('s_lshl_b32 %s, %s, 11' % (sSLOT, sH))
    a('s_lshl_b32 %s, %s, 7' % (sU[0], sSP))
    a('s_add_u32 %s, %s, %s' % (sSLOT, sSLOT, sU[0]))
    a('s_and_b32 %s, %s, 0x87' % (sU[1], sWG))
    a('s_mul_i32 %s, %s, 2304' % (sOREC, sU[1]))
    a('s_mul_i32 %s, %s, 144' % (sU[2], sSP))
    a('s_add_u32 %s, %s, %s' % (sOREC, sOREC, sU[2]))
    a('s_lshl_b32 %s, %s, 11' % (sYREC, sU[1]))
    a('s_add_u32 %s, %s, %s' % (sYREC, sYREC, sU[0]))
    a('s_lshl2_add_u32 %s, %s, %s' % (sU[10], sWG, sW))
    a('s_and_b32 %s, %s, 511' % (sWS, sU[10]))
    a('s_lshl_b32 %s, %s, 14' % (sWS, sWS))
    a('s_add_u32 %s, %s, 0x%x' % (sWS, sWS, WS_OFF))
    a('s_getreg_b32 %s, hwreg(HW_REG_XCC_ID)' % sU[14])
    a('s_waitcnt lgkmcnt(0)')
    a('s_and_b32 %s, %s, 7' % (sXCC, sU[14]))
    a('s_mov_b64 s[4:5], %s' % S_K)
    a('s_mov_b64 s[12:13], %s' % S_WS)
    a('s_mov_b64 s[8:9], %s' % S_V)
    if cfg.stamps:
        a('s_lshl_b32 %s, %s, 11' % (sSTO, sU[10]))
        a('s_add_u32 %s, %s, 0x%x' % (sSTO, sSTO, DBG_OFF))
    stamp(0)
    Ln = NL('L_n')
    a('s_cmp_lg_u32 %s, 0' % sGRP)
    a('s_cbranch_scc1 %s' % Ln)
    for i in (0, 1, 2, 3): issue_group(i)
    a.label(Ln)
    a('s_and_b32 %s, %s, 127' % (sU[0], sWG))
    a('s_mul_i32 %s, %s, 3856' % (sU[1], sU[0]))
    a('s_lshr_b32 %s, %s, 16' % (sU[1], sU[1]))
    a('s_mul_i32 %s, %s, 17' % (sU[2], sU[1]))
    a('s_lshl1_add_u32 %s, %s, %s' % (sU[1], sU[1], sGRP))
    a('s_cmp_eq_u32 %s, %s' % (sU[2], sU[0]))
    a('s_cselect_b32 %s, %s, 99' % (sFIN, sU[1]))
    a('v_mov_b32 v12, 0\nv_mov_b32 v13, 0\nv_mov_b32 v14, 0\nv_mov_b32 v15, 0')
    a('v_lshlrev_b32 v11, 4, v0')
    a('v_lshrrev_b32 v10, 3, v0')
    a('v_lshlrev_b32 v10, 15, v10')
    a('v_and_b32 v16, 0x70, v11')
    a('v_add_u32 v10, v10, v16')
    a('s_lshl_b32 %s, %s, 17' % (sU[0], sW))
    a('s_lshl_b32 %s, %s, 14' % (sU[1], sGRP))
    a('s_add_u32 %s, %s, %s' % (sU[0], sU[0], sU[1]))
    a('s_add_u32 %s, %s, %s' % (sU[0], sU[0], sSLOT))
    a('s_add_u32 %s, %s, 0x%x' % (sU[0], sU[0], QB_OFF))
    Ln = NL('L_n')
    a('s_cmp_eq_u32 %s, 0' % sW)
    a('s_cbranch_scc1 %s' % Ln)
    a('s_mov_b32 exec_hi, 0')
    a('buffer_store_dwordx4 v[12:15], v10, %s, %s offen sc1' % (SRD_W, sU[0]))
    a('s_mov_b64 exec, -1')
    a.label(Ln)
    Lc, Le = NL('L_c'), NL('L_c')
    a('s_and_b32 %s, %s, 1' % (sU[1], sW))
    a('s_cmp_ge_u32 %s, 2' % sW)
    a('s_cbranch_scc1 %s' % Lc)
    a('s_mul_i32 %s, %s, 2304' % (sU[0], sWG))
    a('s_mul_i32 %s, %s, 0x%x' % (sU[1], sU[1], OB_SET))
    a('s_add_u32 %s, %s, %s' % (sU[0], sU[0], sU[1]))
    for off in (0, 1024, 1280):
        a('buffer_store_dwordx4 v[12:15], v11, %s, %s offen offset:%d sc1' % (SRD_W, sU[0], off))
    a('s_branch %s' % Le)
    a.label(Lc)
    a('s_lshl_b32 %s, %s, 11' % (sU[0], sWG))
    a('s_lshl_b32 %s, %s, 19' % (sU[1], sU[1]))
    a('s_add_u32 %s, %s, %s' % (sU[0], sU[0], sU[1]))
    a('s_add_u32 %s, %s, 0x%x' % (sU[0], sU[0], YL_OFF))
    for off in (0, 1024):
        a('buffer_store_dwordx4 v[12:15], v11, %s, %s offen offset:%d sc1' % (SRD_W, sU[0], off))
    a.label(Le)
    a('s_and_b32 %s, %s, 511' % (sU[5], sU[10]))
    a('s_mul_i32 %s, %s, 40' % (sU[5], sU[5]))
    a('s_add_u32 %s, %s, 0x%x' % (sU[5], sU[5], TB_OFF))
    Ln = NL('L_n')
    a('s_cmp_eq_u32 %s, 0' % sGRP)
    a('s_cbranch_scc1 %s' % Ln)
    a('v_lshlrev_b32 v10, 2, v0')
    a('s_mov_b64 exec, 0x3ff')
    a('buffer_store_dword v12, v10, %s, %s offen sc1' % (SRD_W, sU[5]))
    a('s_mov_b64 exec, -1')
    a.label(Ln)
    a('v_mov_b32 v10, 0')
    a('global_load_ushort v20, v10, %s' % S_B2)
    def arrive():
        a('s_barrier')
        Lsk = NL('L_sk')
        only_wave(3, Lsk)
        a('s_mul_i32 %s, %s, 6' % (sU[0], sXCC))
        a('s_lshl_b64 s[78:79], 1, %s' % sU[0])
        a('s_or_b32 s79, s79, 0x10000')
        a('v_mov_b32 v62, s78\nv_mov_b32 v63, s79')
        a('s_lshl_b32 %s, %s, 3' % (sU[0], sH))
        a('v_mov_b32 v10, %s' % sU[0])
        a('s_mov_b64 exec, 1')
        a('global_atomic_add_x2 v[62:63], v10, v[62:63], %s sc0 sc1' % S_DBG)
        a('s_mov_b64 exec, -1')
        a.label(Lsk)
    def raise_go():
        Lsk = NL('L_sk')
        only_wave(3, Lsk)
        a('v_readfirstlane_b32 s78, v62')
        a('v_readfirstlane_b32 s79, v63')
        a('s_lshr_b32 %s, s79, 16' % sU[0])
        a('s_cmp_eq_u32 %s, 31' % sU[0])
        a('s_cbranch_scc0 %s' % Lsk)
        a('s_mul_i32 %s, %s, 6' % (sU[0], sXCC))
        a('s_lshr_b64 s[78:79], s[78:79], %s' % sU[0])
        a('s_and_b32 %s, s78, 63' % sU[0])
        a('s_cmp_eq_u32 %s, 31' % sU[0])
        a('s_cselect_b32 %s, 3, 2' % sU[0])
        a('v_mov_b32 v11, %s' % sU[0])
        a('s_lshl_b32 %s, %s, 2' % (sU[0], sH))
        a('v_mov_b32 v10, %s' % sU[0])
        a('s_mov_b64 exec, 1')
        a('global_store_dword v10, v11, %s offset:128 sc1' % S_DBG)
        a('s_mov_b64 exec, -1')
        a.label(Lsk)
    a('s_cmp_lg_u32 %s, 0' % sGRP)
    a('s_cbranch_scc1 L_late')
    a('s_waitcnt vmcnt(0)')
    for i in (8, 9): issue_group(i)
    move(0)
    move(1)
    arrive()
    a('v_lshlrev_b32 v20, 16, v20')
    a('v_readfirstlane_b32 %s, v20' % sB2V)
    for i in (10, 11): issue_group(i)
    a('s_waitcnt lgkmcnt(0)')
    for i in (4, 5): issue_group(i)
    a('s_waitcnt vmcnt(16)')
    raise_go()
    move(4)
    for i in (6, 7): issue_group(i)
    a('s_waitcnt vmcnt(16)')
    move(5)
    stamp(1)
    a('s_branch L_join')

    a.label('L_late')
    a('v_min_u32 v10, 55, v0')
    a('s_mul_i32 %s, %s, 1792' % (sU[0], sW))
    a('v_lshl_add_u32 v10, v10, 4, %s' % sU[0])
    a('global_load_dwordx4 v[48:51], v10, %s' % S_X)
    a('global_load_dwordx4 v[52:55], v10, %s offset:896' % S_X)
    a('s_lshl_b32 %s, %s, 9' % (sU[0], sH))
    a('s_lshl_b32 %s, %s, 5' % (sU[1], sSP))
    a('s_add_u32 %s, %s, %s' % (sU[2], sU[0], sU[1]))
    a('s_mul_i32 %s, %s, %d' % (sU[0], sW, 112 * 8192))
    a('s_lshl_b32 %s, %s, 1' % (sU[1], sU[2]))
    a('s_add_u32 %s, %s, %s' % (sU[0], sU[0], sU[1]))
    a('v_lshrrev_b32 v10, 2, v0')
    a('v_lshlrev_b32 v10, 13, v10')
    a('v_and_b32 v11, 3, v0')
    a('v_lshl_add_u32 v10, v11, 4, v10')
    a('v_add_u32 v10, %s, v10' % sU[0])
    for i in range(7):
        a('global_load_dwordx4 %s, v10, %s nt' % (vr(64 + 4 * i, 4), S_WQ))
        if i < 6: a('v_add_u32 v10, %d, v10' % (16 * 8192))
    a('s_mul_i32 %s, %s, 896' % (sU[0], sU[2]))
    a('s_mul_i32 %s, %s, 224' % (sU[1], sW))
    a('s_add_u32 %s, %s, %s' % (sU[0], sU[0], sU[1]))
    a('v_and_b32 v10, 15, v0')
    a('v_min_u32 v10, 13, v10')
    a('v_lshlrev_b32 v10, 2, v10')
    a('v_lshrrev_b32 v11, 4, v0')
    a('v_mad_u32_u24 v10, v11, 56, v10')
    a('v_add_u32 v10, %s, v10' % sU[0])
    for r in range(32):
        if r and r % 4 == 0: a('v_add_u32 v10, %d, v10' % (4 * 896))
        a('global_load_dword v%d, v10, %s offset:%d nt' % (96 + r, S_WO, (r % 4) * 896))
    a('s_waitcnt vmcnt(39)')
    a('v_lshlrev_b32 v20, 16, v20')
    a('v_readfirstlane_b32 %s, v20' % sB2V)
    for rr in range(2):
        for i in range(4):
            a('v_lshlrev_b32 v%d, 16, v%d' % (20 + 2 * i, 48 + 4 * rr + i))
            a('v_and_b32 v%d, 0xffff0000, v%d' % (21 + 2 * i, 48 + 4 * rr + i))
        a('v_readlane_b32 %s, v20, 0' % sU[3])
        a('v_cmp_gt_u32 vcc, 56, v0')
        for c in range(8): a('v_subrev_f32 v%d, %s, v%d' % (28 + c, sU[3], 20 + c))
        a('v_pk_mul_f32 v[38:39], v[28:29], v[28:29]')
        a('v_pk_add_f32 v[36:37], v[28:29], v[30:31]')
        for c in (2, 4, 6): a('v_pk_fma_f32 v[38:39], %s, %s, v[38:39]' % (vr(28 + c, 2), vr(28 + c, 2)))
        a('v_pk_add_f32 v[32:33], v[32:33], v[34:35]')
        a('v_pk_add_f32 v[36:37], v[36:37], v[32:33]')
        a('v_add_f32 v36, v36, v37')
        a('v_add_f32 v37, v38, v39')
        a('v_cndmask_b32 v36, 0, v36, vcc')
        a('v_cndmask_b32 v37, 0, v37, vcc')
        wave_sum(['v36', 'v37'])
        a('v_readlane_b32 %s, v36, 63' % sU[1])
        a('v_readlane_b32 %s, v37, 63' % sU[2])
        a('v_mov_b32 v38, %s' % f32(1.0 / 448))
        a('v_mul_f32 v36, %s, v38' % sU[1])
        a('v_mul_f32 v37, %s, v38' % sU[2])
        a('v_fma_f32 v37, -v36, v36, v37')
        a('v_add_f32 v36, %s, v36' % sU[3])
        a('v_max_f32 v37, 0, v37')
        ln_finish('v36', 'v37', 'v38', 'v39')
        ln_vec(20, 20, 8, 38, final_round=False)
        for i in range(4): a('v_cvt_pk_bf16_f32 v%d, v%d, v%d' % (28 + i, 20 + 2 * i, 21 + 2 * i))
        a('s_mul_i32 %s, %s, 2080' % (sU[0], sW))
        a('v_lshl_add_u32 v10, v0, 4, %s' % sU[0])
        a('ds_write_b128 v10, v[28:31] offset:%d' % (1040 * rr))
    a('s_waitcnt vmcnt(32)')
    a('v_lshl_add_u32 v10, v0, 4, %s' % sRING)
    for i in range(7): a('ds_write_b128 v10, %s offset:%d' % (vr(64 + 4 * i, 4), 3 * 8192 + 1024 * i))
    a('v_lshrrev_b32 v10, 4, v0')
    a('v_bfe_u32 v11, v0, 2, 2')
    a('v_lshl_add_u32 v10, v10, 3, v11')
    a('v_and_b32 v11, 3, v0')
    a('v_lshlrev_b32 v11, 3, v11')
    a('v_lshl_add_u32 v10, v10, 6, v11')
    a('v_add_u32 v10, %s, v10' % sRING)
    for ct in range(2):
        for k in range(4):
            r = 128 + 16 * ct + 4 * k
            a('ds_read_b64_tr_b16 %s, v10 offset:%d' % (vr(r, 2), 3 * 8192 + 1792 * k + 32 * ct))
            a('ds_read_b64_tr_b16 %s, v10 offset:%d' % (vr(r + 2, 2), 3 * 8192 + 1792 * k + 32 * ct + 256))
    a('s_mov_b32 vcc_lo, -1')
    a('s_mov_b32 vcc_hi, 0x0000ffff')
    a('v_and_b32 v10, 7, v0')
    a('v_mul_u32_u24 v10, 1040, v10')
    a('v_and_b32 v11, 48, v0')
    a('s_mul_i32 %s, %s, 224' % (sU[0], sW))
    a('v_add3_u32 v10, v10, v11, %s' % sU[0])
    barrier()
    for k in range(4): a('ds_read2_b64 %s, v10 offset0:%d offset1:%d' % (vr(20 + 4 * k, 4), 7 * k, 7 * k + 1))
    for k in range(8):
        a('v_cndmask_b32 v%d, 0, v%d, vcc' % (130 + 4 * k, 130 + 4 * k))
        a('v_cndmask_b32 v%d, 0, v%d, vcc' % (131 + 4 * k, 131 + 4 * k))
    a('v_lshlrev_b32 v9, 4, v0')
    a('s_add_u32 %s, %s, 8192' % (sU[0], sWS))
    a('s_add_u32 %s, %s, 12288' % (sU[1], sWS))
    for k in range(8): a('buffer_store_dwordx4 %s, v9, %s, %s offen offset:%d sc1' % (vr(128 + 4 * k, 4), SRD_W, sU[k >> 2], 1024 * (k & 3)))
    a('s_waitcnt lgkmcnt(0)')
    for k in range(4):
        for ct in range(2):
            acc = vr(36 + 4 * ct, 4)
            a('v_mfma_f32_16x16x32_bf16 %s, %s, %s, %s' % (acc, vr(20 + 4 * k, 4), vr(128 + 16 * ct + 4 * k, 4), '0' if k == 0 else acc))
    a('s_lshl_b32 %s, %s, 10' % (sU[0], sW))
    a('v_lshl_add_u32 v10, v0, 4, %s' % sU[0])
    a('s_mov_b32 exec_hi, 0')
    a('ds_write_b128 v10, v[36:39] offset:%d' % L_COMB)
    a('ds_write_b128 v10, v[40:43] offset:%d' % (L_COMB + 512))
    a('s_mov_b64 exec, -1')
    a('v_bfe_u32 v10, v0, 4, 1')
    a('v_and_b32 v11, 15, v0')
    a('v_lshlrev_b32 v11, 4, v11')
    a('v_lshl_add_u32 v10, v10, 9, v11')
    a('v_lshrrev_b32 v11, 5, v0')
    a('v_lshl_add_u32 v10, v11, 2, v10')
    a('s_lshr_b32 %s, %s, 1' % (sU[0], sW))
    a('s_lshl_b32 %s, %s, 8' % (sU[0], sU[0]))
    a('s_and_b32 %s, %s, 1' % (sU[1], sW))
    a('s_lshl3_add_u32 %s, %s, %s' % (sU[0], sU[1], sU[0]))
    a('s_add_u32 %s, %s, %d' % (sU[0], sU[0], L_COMB))
    a('v_add_u32 v10, %s, v10' % sU[0])
    barrier()
    a('ds_read2st64_b32 v[20:21], v10 offset0:0 offset1:4')
    a('ds_read2st64_b32 v[22:23], v10 offset0:8 offset1:12')
    a('s_lshl_b32 %s, %s, 15' % (sU[0], sW))
    a('s_add_u32 %s, %s, %s' % (sU[0], sU[0], sSLOT))
    a('s_add_u32 %s, %s, 0x%x' % (sU[0], sU[0], QB_OFF))
    a('v_and_b32 v10, 31, v0')
    a('v_lshlrev_b32 v10, 2, v10')
    a('v_lshl_add_u32 v10, v11, 14, v10')
    a('s_waitcnt lgkmcnt(0)')
    a('v_pk_add_f32 v[20:21], v[20:21], v[22:23]')
    a('v_add_f32 v20, v20, v21')
    a('v_cvt_pk_bf16_f32 v20, v20, v20')
    a('v_lshl_or_b32 v20, v20, 16, 1')
    a('buffer_store_dword v20, v10, %s, %s offen sc1' % (SRD_W, sU[0]))
    a('s_waitcnt vmcnt(0)')
    a('s_mov_b32 %s, 0x05040100' % sU[0])
    a('s_mov_b32 %s, 0x07060302' % sU[1])
    for aa in range(8):
        for cgi in range(2):
            for hh in range(2):
                r0 = 96 + 4 * aa + 2 * hh
                a('v_perm_b32 v%d, v%d, v%d, %s' % (160 + aa * 4 + cgi * 2 + hh, r0 + 1, r0, sU[cgi]))
    a('s_add_u32 %s, %s, 4096' % (sU[0], sWS))
    for k in range(8): a('buffer_store_dwordx4 %s, v9, %s, %s offen offset:%d sc1' % (vr(160 + 4 * k, 4), SRD_W, sWS if k < 4 else sU[0], 1024 * (k & 3)))
    a('v_lshlrev_b32 v10, 3, v0')
    for k, ptr in enumerate((S_W1, S_B1, S_W2)):
        for i in range(7):
            a('global_load_dwordx2 %s, v10, %s offset:%d' % (vr(64 + 14 * k + 2 * i, 2), ptr, 512 * i))
    a('s_waitcnt vmcnt(0)')
    arrive()
    stamp(2)
    for i in range(14):
        a('v_lshlrev_b32 v%d, 16, v%d' % (112 + 2 * i, 64 + i))
        a('v_and_b32 v%d, 0xffff0000, v%d' % (113 + 2 * i, 64 + i))
        a('v_lshlrev_b32 v%d, 16, v%d' % (140 + 2 * i, 78 + i))
        a('v_and_b32 v%d, 0xffff0000, v%d' % (141 + 2 * i, 78 + i))
    a('s_waitcnt vmcnt(0)')
    raise_go()
    gelu_consts(12)
    a('s_and_b32 %s, %s, 511' % (sU[0], sU[10]))
    a('s_mul_i32 %s, %s, 10' % (sU[0], sU[0]))
    a('s_add_u32 %s, %s, %d' % (sU[0], sU[0], cfg.ELO * 256))
    a('s_mov_b32 %s, 0' % sU[8])
    a('s_mov_b32 %s, 0' % sU[9])
    a('v_mov_b32 v47, 0')
    def dyn_piece():
        a('s_lshl_b32 %s, %s, 10' % (sU[11], sU[9]))
        a('s_add_u32 m0, %s, %s' % (sRING, sU[11]))
        a('s_and_b32 %s, %s, 7' % (sU[11], sU[9]))
        a('s_lshl_b32 %s, %s, 5' % (sU[11], sU[11]))
        a('s_and_b32 %s, %s, 16' % (sU[12], sU[9]))
        a('s_add_u32 %s, %s, %s' % (sU[12], sU[12], sU[9]))
        a('s_lshl_b32 %s, %s, 12' % (sU[12], sU[12]))
        a('s_or_b32 %s, %s, %s' % (sU[11], sU[11], sU[12]))
        a('v_xor_b32 v3, %s, %s' % (sU[11], vBK))
        a('s_add_u32 %s, %s, 1' % (sU[9], sU[9]))
        a('buffer_load_dwordx4 v3, %s, %s offen nt lds' % (SRD_K, sTB))
    a.label('L_tb')
    for _ in range(cfg.bpre): dyn_piece()
    a('s_add_u32 %s, %s, %s' % (sU[2], sU[0], sU[8]))
    a('s_lshl_b32 %s, %s, 31' % (sU[3], sU[2]))
    a('s_lshr_b32 %s, %s, 1' % (sU[2], sU[2]))
    a('s_lshl_b32 %s, %s, 16' % (sU[2], sU[2]))
    a('s_or_b32 %s, %s, %s' % (sU[2], sU[2], sU[3]))
    a('v_mov_b32 v10, %s' % sU[2])
    for g0 in range(0, 14, 7):
        idx = list(range(g0, g0 + 7))
        gelu_pairs('v[10:11]', [112 + 2 * i for i in idx], [140 + 2 * i for i in idx], [92 + i for i in idx],
                   [16 + 2 * i for i in range(7)], [30 + 2 * i for i in range(7)], [14, 15], 12, g0 == 0)
    mix_finish([14, 15], sU[2])
    a('s_or_b32 %s, %s, 1' % (sU[2], sU[2]))
    a('s_mov_b32 m0, %s' % sU[8])
    a('s_nop 0')
    a('v_writelane_b32 v47, %s, m0' % sU[2])
    a('s_add_u32 %s, %s, 1' % (sU[8], sU[8]))
    a('s_cmp_lt_u32 %s, 10' % sU[8])
    a('s_cbranch_scc1 L_tb')
    a('v_lshlrev_b32 v10, 2, v0')
    a('s_mov_b64 exec, 0x3ff')
    a('buffer_store_dword v47, v10, %s, %s offen sc1' % (SRD_W, sU[5]))
    a('s_mov_b64 exec, -1')
    for _ in range(32 - 10 * cfg.bpre): dyn_piece()
    stamp(26)
    a('s_waitcnt vmcnt(16)')
    move(0)
    move(1)
    a('s_waitcnt lgkmcnt(0)')
    for i in (4, 5, 6, 7): issue_group(i)
    a('s_waitcnt vmcnt(16)')
    move(4)
    move(5)
    a.label('L_join')
    a('s_waitcnt vmcnt(8)')
    move(2)
    a('s_waitcnt lgkmcnt(0)')
    for i in (12, 13): issue_group(i)
    a('s_waitcnt vmcnt(8)')
    move(3)
    a('s_waitcnt lgkmcnt(0)')
    a('s_lshl_b32 %s, %s, 2' % (sU[1], sH))
    a('v_mov_b32 v10, %s' % sU[1])
    a('global_load_dword v60, v10, %s offset:128 sc1' % S_DBG)
    issue_group(14)
    a('s_branch L_mid')

    def q_fetch(layer, b, regs0=12):
        slot_off(sU[0], QB_OFF + layer * 0x20000, b)
        a('s_lshl_b32 %s, %s, 11' % (sU[1], sH))
        a('s_add_u32 %s, %s, %s' % (sU[0], sU[0], sU[1]))
        a('v_lshlrev_b32 v10, 4, v0')
        def issue():
            a('buffer_load_dwordx4 %s, v10, %s, %s offen sc1' % (vr(regs0, 4), SRD_W, sU[0]))
            a('buffer_load_dwordx4 %s, v10, %s, %s offen offset:1024 sc1' % (vr(regs0 + 4, 4), SRD_W, sU[0]))
        poll(issue, vl(regs0, regs0 + 8), '1', 'v11')
        a('s_mov_b32 %s, 0x07060302' % sU[1])
        for i in range(4): a('v_perm_b32 v%d, v%d, v%d, %s' % (regs0 + 8 + i, regs0 + 1 + 2 * i, regs0 + 2 * i, sU[1]))
        a('v_lshlrev_b32 v10, 3, v0')
        a('ds_write_b64 v10, %s offset:%d' % (vr(regs0 + 8, 2), L_QS + 1024 * layer))
        a('ds_write_b64 v10, %s offset:%d' % (vr(regs0 + 10, 2), L_QS + 1024 * layer + 512))

    a.label('L_main')
    D = cfg.D
    pv = PV()
    def qk_tile(t):
        for s in range(8):
            acc = vr(S0 + 4 * t, 4)
            a('v_mfma_f32_16x16x32_bf16 %s, %s, %s, %s' % (acc, hreg(t, 4 * s, 4), vr(QF + 4 * s, 4), '0' if s == 0 else acc))
    def go_check():
        Ln, Lr, Lc = NL('L_n'), NL('L_go'), NL('L_gc')
        a('s_cmp_gt_u32 %s, 1' % sB)
        a('s_cbranch_scc1 %s' % Ln)
        a('s_lshl_b32 %s, %s, 2' % (sU[1], sH))
        a('v_mov_b32 v10, %s' % sU[1])
        a('s_branch %s' % Lc)
        a.label(Lr)
        a('global_load_dword v60, v10, %s offset:128 sc1' % S_DBG)
        tmo_check()
        a('s_waitcnt vmcnt(0)')
        a.label(Lc)
        a('v_cmp_eq_u32 vcc, 0, v60')
        a('s_cbranch_vccnz %s' % Lr)
        a('v_readfirstlane_b32 %s, v60' % sLOC)
        a('s_and_b32 %s, %s, %d' % (sLOC, sLOC, 0 if cfg.force_global else 1))
        a.label(Ln)
    def q1_issue():
        slot_off(sU[0], QB_OFF)
        a('s_lshl_b32 %s, %s, 11' % (sU[1], sH))
        a('s_add_u32 %s, %s, %s' % (sU[0], sU[0], sU[1]))
        a('v_lshlrev_b32 v10, 4, v0')
        a('buffer_load_dwordx4 v[44:47], v10, %s, %s offen sc1' % (SRD_W, sU[0]))
        a('buffer_load_dwordx4 v[48:51], v10, %s, %s offen offset:1024 sc1' % (SRD_W, sU[0]))
    def q1_stage():
        a('s_mov_b32 %s, 0x07060302' % sU[1])
        for i in range(4): a('v_perm_b32 v%d, v%d, v%d, %s' % (52 + i, 45 + 2 * i, 44 + 2 * i, sU[1]))
        a('s_lshl_b32 %s, %s, 10' % (sU[0], sW))
        a('v_lshl_add_u32 v10, v0, 3, %s' % sU[0])
        a('ds_write_b64 v10, v[52:53] offset:%d' % L_Q1)
        a('ds_write_b64 v10, v[54:55] offset:%d' % (L_Q1 + 512))
        q_addr(0, 'v9')
        a('v_add_u32 v9, %s, v9' % sU[0])
        for s in range(8): a('ds_read_b128 %s, v9 offset:%d' % (vr(QF + 4 * s, 4), L_Q1 + 64 * s))
    I_GO = 14 + D
    I_Q = I_GO + D
    def landed(t):
        if t < 14:
            move(t)
            a('s_waitcnt lgkmcnt(0)')
    def w_qk0():
        q1_stage()
        a('s_waitcnt lgkmcnt(0)')
        for u in range(4): qk_tile(u)
    def w_qk1():
        for u in range(4, 8): qk_tile(u)
    def w_pv(t):
        if t == 15: stamp(3)
        if t < 14: pv.reg_tile(t - 8)
        else: pv.lds_tile(t - 8)
    work = [(7, w_qk0, 2), (7, w_qk1, 2), (7, softmax, 2)] + [(t, (lambda t=t: w_pv(t)), 1) for t in range(8, 16)]
    a('s_waitcnt lgkmcnt(0)')
    for t in (2, 3):
        a('s_waitcnt vmcnt(%d)' % (4 * (11 - (2 * t + 1))))
        landed(t)
    done = 3
    def free(n):
        prev = [m for m in range(n) if SLOT[m] == SLOT[n]]
        return not prev or prev[-1] <= done
    for i in range(12, 32 + D):
        if i == 15: a.label('L_mid')
        g = i - D
        a('s_waitcnt vmcnt(%d)' % (4 * (min(i, 32) - g - 1)))
        early = g & 1 and i < 32 and not free(i >> 1)
        if g & 1 and (g >> 1) == 13: assert len(work) <= 8
        if early:
            landed(g >> 1); done = g >> 1
        if i == I_GO:
            go_check()
            q1_issue()
        if i < 32:
            assert free(i >> 1), i
            issue_group(i)
        if g & 1 and not early:
            landed(g >> 1); done = g >> 1
        budget = 2
        while i >= I_Q and work and work[0][0] <= done and work[0][2] <= budget:
            _, fn, cost = work.pop(0)
            fn(); budget -= cost
    assert not work

    def combine(layer):
        if layer == 0: a('s_barrier')
        a('s_lshl_b32 %s, %s, 11' % (sU[0], sW))
        a('v_lshl_add_u32 v28, v0, 2, %s' % sU[0])
        a('v_add_u32 v28, %d, v28' % L_COMB)
        for cg in range(4):
            a('ds_write2st64_b32 v28, v%d, v%d offset0:%d offset1:%d' % (ACC + 4 * cg, ACC + 1 + 4 * cg, cg, 4 + cg))
        a('s_lshl_b32 %s, %s, 4' % (sU[1], sW))
        a('v_lshl_add_u32 v29, v0, 3, %s' % sU[1])
        a('s_mov_b64 exec, 3')
        a('ds_write_b64 v29, v[10:11] offset:%d' % L_ML)
        a('s_mov_b64 exec, -1')
        a('s_lshl_b32 %s, %s, 9' % (sU[0], sW))
        a('v_lshl_add_u32 v28, v0, 3, %s' % sU[0])
        a('s_lshr_b32 %s, %s, 1' % (sU[1], sW))
        a('s_lshl_b32 %s, %s, 3' % (sU[1], sU[1]))
        a('v_mov_b32 v29, %s' % sU[1])
        a('s_lshr_b32 %s, %s, 1' % (sTAG, sB))
        a('s_add_u32 %s, %s, 1' % (sTAG, sTAG))
        a('s_mul_i32 %s, %s, 2304' % (sU[0], sWG))
        a('s_mul_i32 %s, %s, 576' % (sU[1], sW))
        a('s_add_u32 %s, %s, %s' % (sU[0], sU[0], sU[1]))
        a('s_add_u32 %s, %s, 0x%x' % (sU[0], sU[0], OB_OFF + layer * OB_SET))
        a('v_lshrrev_b32 v30, 4, v0')
        a('v_mul_u32_u24 v30, 144, v30')
        a('v_and_b32 v31, 15, v0')
        a('v_lshl_add_u32 v31, v31, 3, v30')
        barrier()
        for w in range(4): a('ds_read_b64 %s, v29 offset:%d' % (vr(12 + 2 * w, 2), L_ML + 16 * w))
        for w in range(4): a('ds_read_b64 %s, v28 offset:%d' % (vr(20 + 2 * w, 2), L_COMB + 2048 * w))
        a('s_waitcnt lgkmcnt(4)')
        a('v_max3_f32 v10, v12, v14, v16')
        a('v_max_f32 v10, v10, v18')
        for w in range(4): a('v_sub_f32 v%d, v%d, v10' % (12 + 2 * w, 12 + 2 * w))
        for w in range(4): a('v_exp_f32 v%d, v%d' % (12 + 2 * w, 12 + 2 * w))
        a('v_mul_f32 v11, v12, v13')
        for w in range(1, 4): a('v_fmac_f32 v11, v%d, v%d' % (12 + 2 * w, 13 + 2 * w))
        a('s_waitcnt lgkmcnt(0)')
        a('v_pk_mul_f32 v[20:21], v[20:21], v[12:13] op_sel_hi:[1,0]')
        a('v_rcp_f32 v32, v11')
        a('v_log_f32 v11, v11')
        for w in range(1, 4): a('v_pk_fma_f32 v[20:21], %s, %s, v[20:21] op_sel_hi:[1,0,1]' % (vr(20 + 2 * w, 2), vr(12 + 2 * w, 2)))
        a('v_add_f32 v10, v10, v11')
        a('v_pk_mul_f32 v[20:21], v[20:21], v[32:33] op_sel_hi:[1,0]')
        a('v_bfi_b32 v10, -16, v10, %s' % sTAG)
        a('v_bfi_b32 v20, -16, v20, %s' % sTAG)
        a('v_bfi_b32 v21, -16, v21, %s' % sTAG)
        lstore('buffer_store_dwordx2 v[20:21], v31, %s, %s offen' % (SRD_W, sU[0]),
               's_mov_b32 exec_lo, 0x00010001', 's_mov_b32 exec_hi, 0x00010001',
               'buffer_store_dword v10, v30, %s, %s offen offset:128' % (SRD_W, sU[0]))
        a('s_mov_b64 exec, -1')
    combine(0)
    stamp(5)

    WR = 32
    def load_w(off):
        a('v_lshlrev_b32 v9, 4, v0')
        a('s_add_u32 %s, %s, %d' % (sU[6], sWS, off))
        a('s_add_u32 %s, %s, %d' % (sU[7], sWS, off + 4096))
        for k in range(8): a('buffer_load_dwordx4 %s, v9, %s, %s offen offset:%d sc1' % (vr(WR + 4 * k, 4), SRD_W, sU[6 + (k >> 2)], 1024 * (k & 3)))
    def lane_rec(stride):
        a('v_lshrrev_b32 v11, 3, v0')
        a('v_mul_u32_u24 v11, %d, v11' % stride)
        a('v_and_b32 v10, 7, v0')
        a('v_lshl_add_u32 v10, v10, 4, v11')
    def role_layer(Lskip, tail):
        a('s_sub_u32 %s, %s, 1' % (sPASS, sW))
        a('s_cmp_gt_u32 %s, 1' % sPASS)
        a('s_cbranch_scc1 %s' % Lskip)
        if tail: only_wave(2, Lskip)
        a('s_lshr_b32 %s, %s, 1' % (sU[4], sB))
        a('s_add_u32 %s, %s, 1' % (sU[4], sU[4]))
        a('s_sub_u32 %s, %s, %s' % (sU[4], sU[4], sPASS))
        a('s_cmp_eq_u32 %s, 0' % sU[4])
        a('s_cbranch_scc1 %s' % Lskip)
    def o_and_r(tail):
        load_w(0)
        Lo = NL('L_o')
        role_layer(Lo, tail)
        lane_rec(8 * 2304)
        a('s_mul_i32 %s, %s, 0x%x' % (sU[0], sPASS, OB_SET))
        a('s_add_u32 %s, %s, %s' % (sU[0], sU[0], sOREC))
        a('s_add_u32 %s, %s, %d' % (sU[1], sU[0], 8 * 8 * 2304))
        def issue():
            a('buffer_load_dwordx4 v[12:15], v10, %s, %s offen sc1' % (SRD_W, sU[0]))
            a('buffer_load_dwordx4 v[16:19], v10, %s, %s offen sc1' % (SRD_W, sU[1]))
            a('buffer_load_dword v20, v11, %s, %s offen offset:128 sc1' % (SRD_W, sU[0]))
            a('buffer_load_dword v21, v11, %s, %s offen offset:128 sc1' % (SRD_W, sU[1]))
        poll(issue, vl(12, 22), sU[4], 'v22')
        stamp(7)
        a('v_max_f32 v22, v20, v21')
        a('v_max_f32_dpp v22, v22, v22 ' + ROR8)
        xrow('v_max_f32', ['v22'], ['v23'])
        a('v_sub_f32 v20, v20, v22')
        a('v_sub_f32 v21, v21, v22')
        a('v_exp_f32 v20, v20')
        a('v_exp_f32 v21, v21')
        for c in (0, 2): a('v_pk_mul_f32 %s, %s, v[20:21] op_sel_hi:[1,0]' % (vr(12 + c, 2), vr(12 + c, 2)))
        for c in (0, 2): a('v_pk_fma_f32 %s, %s, v[20:21], %s op_sel:[0,1,0] op_sel_hi:[1,1,1]' % (vr(12 + c, 2), vr(16 + c, 2), vr(12 + c, 2)))
        a('v_add_f32 v16, v20, v21')
        R5 = vl(12, 17)
        for r in R5: a('v_add_f32_dpp %s, %s, %s %s' % (r, r, r, ROR8))
        xrow('v_add_f32', R5, vl(17, 22))
        a('v_rcp_f32 v16, v16')
        a('s_lshl_b32 %s, %s, 6' % (sU[0], sPASS))
        a('v_lshl_add_u32 v10, v0, 3, %s' % sU[0])
        for c in (0, 2): a('v_pk_mul_f32 %s, %s, v[16:17] op_sel_hi:[1,0]' % (vr(12 + c, 2), vr(12 + c, 2)))
        a('v_cvt_pk_bf16_f32 v18, v12, v13')
        a('v_cvt_pk_bf16_f32 v19, v14, v15')
        a('s_mov_b64 exec, 0xff')
        a('ds_write_b64 v10, v[18:19] offset:%d' % L_MBO)
        a('s_mov_b64 exec, -1')
        a.label(Lo)
        a('v_and_b32 v10, 1, v0')
        a('v_bfe_u32 v11, v0, 2, 3')
        a('v_lshlrev_b32 v11, 3, v11')
        a('v_lshl_add_u32 v10, v10, 6, v11')
        a('s_lshr_b32 %s, %s, 1' % (sU[3], sB))
        a('s_add_u32 %s, %s, 1' % (sU[2], sU[3]))
        a('s_lshl_b32 %s, %s, 9' % (sU[0], sW))
        a('s_lshl_b32 %s, %s, 11' % (sU[1], sWG))
        a('s_add_u32 %s, %s, %s' % (sU[0], sU[0], sU[1]))
        a('s_add_u32 %s, %s, 0x%x' % (sU[0], sU[0], YL_OFF))
        a('s_add_u32 %s, %s, 0x%x' % (sU[1], sU[0], YL_SET))
        a('s_waitcnt vmcnt(0)')
        barrier()
        a('ds_read_b64 v[18:19], v10 offset:%d' % L_MBO)
        a('v_lshlrev_b32 v10, 3, v0')
        a('s_waitcnt lgkmcnt(0)')
        for aa in range(8):
            for cgi in range(2):
                acc = vr(20 + 4 * cgi, 4)
                a('v_mfma_f32_4x4x4_16b_bf16 %s, v[18:19], %s, %s cbsz:4 abid:%d' %
                  (acc, vr(WR + aa * 4 + cgi * 2, 2), '0' if aa == 0 else acc, aa))
        a('v_bfi_b32 v12, -16, v20, %s' % sU[2])
        a('v_bfi_b32 v13, -16, v24, %s' % sU[2])
        a('v_bfi_b32 v14, -16, v21, %s' % sU[3])
        a('v_bfi_b32 v15, -16, v25, %s' % sU[3])
        st = []
        if not tail: st.append('buffer_store_dwordx2 v[12:13], v10, %s, %s offen' % (SRD_W, sU[0]))
        st.append('buffer_store_dwordx2 v[14:15], v10, %s, %s offen' % (SRD_W, sU[1]))
        lstore(*st)
        stamp(9)
        if not tail: load_w(8192)
        Lo = NL('L_o')
        role_layer(Lo, tail)
        lane_rec(16384)
        a('s_lshl_b32 %s, %s, 19' % (sU[0], sPASS))
        a('s_add_u32 %s, %s, %s' % (sU[0], sU[0], sYREC))
        a('s_add_u32 %s, %s, 0x%x' % (sU[0], sU[0], YL_OFF))
        a('s_add_u32 %s, %s, 0x20000' % (sU[1], sU[0]))
        def issue():
            a('buffer_load_dwordx4 v[12:15], v10, %s, %s offen sc1' % (SRD_W, sU[0]))
            a('buffer_load_dwordx4 v[16:19], v10, %s, %s offen sc1' % (SRD_W, sU[1]))
        poll(issue, vl(12, 20), sU[4], 'v22')
        stamp(11)
        R4 = vl(12, 16)
        for c in (0, 2): a('v_pk_add_f32 %s, %s, %s' % (vr(12 + c, 2), vr(12 + c, 2), vr(16 + c, 2)))
        for r in R4: a('v_add_f32_dpp %s, %s, %s %s' % (r, r, r, ROR8))
        xrow('v_add_f32', R4, vl(16, 20))
        for r in R4: a('v_bfi_b32 %s, -16, %s, 1' % (r, r))
        a('s_mul_i32 %s, %s, 6' % (sU[0], sPASS))
        a('s_add_u32 %s, %s, %s' % (sU[0], sU[0], sB))
        slot_off(sU[0], XP_OFF, sU[0])
        a('s_add_u32 %s, %s, %s' % (sU[0], sU[0], sSLOT))
        a('s_mov_b64 exec, 0xff')
        a('buffer_store_dwordx4 v[12:15], v10, %s, %s offen sc1' % (SRD_W, sU[0]))
        a('s_mov_b64 exec, -1')
        stamp(13)
        a.label(Lo)
    o_and_r(False)

    def table_fetch():
        Ln, Lr = NL('L_n'), NL('L_tg')
        a('s_cmp_gt_u32 %s, 1' % sB)
        a('s_cbranch_scc1 %s' % Ln)
        a('v_and_b32 v10, 7, v0')
        a('v_lshlrev_b32 v10, 2, v10')
        a.label(Lr)
        a('global_load_dword v11, v10, %s offset:128 sc1' % S_DBG)
        tmo_check()
        a('s_waitcnt vmcnt(0)')
        a('v_cmp_eq_u32 vcc, 0, v11')
        a('s_cbranch_vccnz %s' % Lr)
        a('s_mul_i32 %s, %s, 5120' % (sU[0], sW))
        a('s_add_u32 %s, %s, 0x%x' % (sU[0], sU[0], TB_OFF))
        a('s_add_u32 %s, %s, 4096' % (sU[1], sU[0]))
        a('v_lshlrev_b32 v10, 4, v0')
        def issue():
            for i in range(5):
                a('buffer_load_dwordx4 %s, v10, %s, %s offen offset:%d sc1' % (vr(12 + 4 * i, 4), SRD_W, sU[i >> 2], 1024 * (i & 3)))
        poll(issue, vl(12, 32), '1', 'v11')
        a('s_mov_b32 %s, 0x07060302' % sU[1])
        for i in range(10): a('v_perm_b32 v%d, v%d, v%d, %s' % (12 + i, 13 + 2 * i, 12 + 2 * i, sU[1]))
        a('s_mul_i32 %s, %s, 2560' % (sU[0], sW))
        a('v_lshl_add_u32 v10, v0, 3, %s' % sU[0])
        for i in range(5): a('ds_write_b64 v10, %s offset:%d' % (vr(12 + 2 * i, 2), L_TBL + 512 * i))
        a.label(Ln)
    table_fetch()

    def col_quad(dst, tmp):
        a('v_bfe_u32 %s, v0, 3, 2' % dst)
        a('v_and_b32 %s, 7, v0' % tmp)
        a('v_min_u32 %s, 6, %s' % (tmp, tmp))
        a('v_lshlrev_b32 %s, 2, %s' % (tmp, tmp))
        a('v_mad_u32_u24 %s, %s, 28, %s' % (dst, dst, tmp))
    def row_stats():
        a('s_xor_b32 %s, %s, 64' % (sXN, sXN))
        a('v_readlane_b32 %s, v10, 0' % sU[3])
        a('s_mov_b32 vcc_lo, 0x7f7f7f7f')
        a('s_mov_b32 vcc_hi, 0x7f7f7f7f')
        a('s_lshl4_add_u32 %s, %s, %s' % (sU[2], sW, sXN))
        for c in range(4): a('v_subrev_f32 v%d, %s, v%d' % (14 + c, sU[3], 10 + c))
        a('v_mov_b32 v22, %s' % sU[2])
        a('v_pk_mul_f32 v[20:21], v[14:15], v[14:15]')
        a('v_pk_add_f32 v[18:19], v[14:15], v[16:17]')
        a('v_pk_fma_f32 v[20:21], v[16:17], v[16:17], v[20:21]')
        a('v_add_f32 v18, v18, v19')
        a('v_and_b32 v23, 3, v0')
        a('v_add_f32 v19, v20, v21')
        a('v_mov_b32 v20, %s' % sU[3])
        a('v_cndmask_b32 v18, 0, v18, vcc')
        a('v_cndmask_b32 v19, 0, v19, vcc')
        a('v_lshl_add_u32 v23, v23, 4, %s' % sXN)
        wave_sum(['v18', 'v19'], 5)
        a('s_mov_b32 exec_lo, 0x80000000')
        a('s_mov_b32 exec_hi, 0')
        a('ds_write_b128 v22, v[18:21] offset:%d' % L_MX)
        a('s_mov_b64 exec, -1')
        a('v_mov_b32 v24, %s' % f32(112.0))
        barrier()
        a('ds_read_b128 v[14:17], v23 offset:%d' % L_MX)
        a('s_waitcnt lgkmcnt(0)')
        a('v_fma_f32 v26, v16, v24, v14')
        a('v_mul_f32 v14, -2.0, v14')
        wave_sum(['v26'], 2)
        a('v_mul_f32 v26, %s, v26' % f32(1.0 / 448))
        a('v_sub_f32 v16, v26, v16')
        a('v_fmac_f32 v14, v16, v24')
        a('v_fmac_f32 v15, v16, v14')
        wave_sum(['v15'], 2)
        a('v_mul_f32 v27, %s, v15' % f32(1.0 / 448))
        a('v_max_f32 v27, 0, v27')
    def dbg_quad(kind):
        if not cfg.stamps: return
        a('s_lshl_b32 %s, %s, 11' % (sU[1], sB))
        a('s_lshl_b32 %s, %s, 9' % (sU[2], sW))
        a('s_add_u32 %s, %s, %s' % (sU[1], sU[1], sU[2]))
        a('s_add_u32 %s, %s, 0x%x' % (sU[1], sU[1], XDBG_OFF + kind * 0x4000))
        a('v_lshlrev_b32 v3, 4, v0')
        a('s_mov_b32 exec_hi, 0')
        a('buffer_store_dwordx4 v[10:13], v3, %s, %s offen' % (SRD_W, sU[1]))
        a('s_mov_b64 exec, -1')

    def mixer_step(layer, after_gather=None):
        a('s_lshl_b32 %s, %s, 11' % (sU[8], sB))
        a('s_lshl_b32 %s, %s, 9' % (sU[2], sW))
        a('s_add_u32 %s, %s, %s' % (sU[8], sU[8], sU[2]))
        a('s_add_u32 %s, %s, 0x%x' % (sU[8], sU[8], XS_OFF))
        a('v_and_b32 v7, 31, v0')
        a('v_lshlrev_b32 v7, 4, v7')
        if layer == 0:
            col_quad('v8', 'v9')
            a('s_mul_i32 %s, %s, 896' % (sU[1], sB))
            a('s_mul_i32 %s, %s, 224' % (sU[0], sW))
            a('s_add_u32 %s, %s, %s' % (sU[1], sU[1], sU[0]))
            a('v_lshl_add_u32 v8, v8, 1, %s' % sU[1])
            a('global_load_dwordx2 v[28:29], v8, %s' % S_X)
        else:
            a('buffer_load_dwordx4 v[28:31], v7, %s, %s offen sc1' % (SRD_W, sU[8]))
        slot_off(sU[0], XP_OFF + layer * 0x20000)
        a('s_add_u32 %s, %s, %s' % (sU[0], sU[0], sU[2]))
        a('s_add_u32 %s, %s, 4096' % (sU[1], sU[0]))
        a('v_lshrrev_b32 v9, 5, v0')
        a('v_lshl_add_u32 v9, v9, 13, v7')
        barrier()
        if cfg.dX: a('s_sleep %d' % cfg.dX)
        stamp(27 + layer)
        def issue():
            for i in range(4):
                a('buffer_load_dwordx4 %s, v9, %s, %s offen offset:%d sc1' % (vr(10 + 4 * i, 4), SRD_W, sU[i >> 1], 2048 * (i & 1)))
        poll(issue, vl(10, 26), '1', 'v8')
        if after_gather: after_gather()
        stamp(15 + layer)
        for c in (0, 2): a('v_pk_add_f32 %s, %s, %s' % (vr(10 + c, 2), vr(10 + c, 2), vr(14 + c, 2)))
        for c in (0, 2): a('v_pk_add_f32 %s, %s, %s' % (vr(18 + c, 2), vr(18 + c, 2), vr(22 + c, 2)))
        for c in (0, 2): a('v_pk_add_f32 %s, %s, %s' % (vr(10 + c, 2), vr(10 + c, 2), vr(18 + c, 2)))
        if layer == 0:
            a('v_and_b32 v31, 0xffff0000, v29\nv_lshlrev_b32 v30, 16, v29\nv_and_b32 v29, 0xffff0000, v28\nv_lshlrev_b32 v28, 16, v28')
        xrow('v_add_f32', vl(10, 14), vl(14, 18), swaps=('v_permlane32_swap_b32',))
        bf16r(vl(10, 14))
        for c in (0, 2): a('v_pk_add_f32 %s, %s, %s' % (vr(10 + c, 2), vr(10 + c, 2), vr(28 + c, 2)))
        bf16r(vl(10, 14))
        dbg_quad(2 * layer)
        row_stats()
        ln_finish('v26', 'v27', 'v28', 'v29')
        a('v_sub_f32 v26, v26, v28')
        a('v_mul_f32 v27, v27, v29')
        a('v_mul_f32 v26, v26, v29')
        a('v_mul_f32 v27, v27, v29')
        ln_vec(10, 18, 4, 28)
        ln_finish('v26', 'v27', 'v28', 'v29')
        ln_vec(18, 18, 4, 28)
        Y = [22, 23, 24, 25]
        for c in range(4): a('v_lshrrev_b32 v%d, 31, v%d' % (Y[c], 18 + c))
        for c in range(4): a('v_bfe_u32 v%d, v%d, 14, 17' % (18 + c, 18 + c))
        for c in range(4): a('v_lshl_add_u32 v%d, v%d, 1, v%d' % (18 + c, Y[c], 18 + c))
        for c in range(4): a('v_subrev_u32 v%d, %d, v%d' % (18 + c, cfg.ELO * 512, 18 + c))
        for c in range(4): a('v_min_u32 v%d, 10238, v%d' % (Y[c], 18 + c))
        for c in range(4): a('ds_read_u16 v%d, v%d offset:%d' % (Y[c], Y[c], L_TBL))
        a('v_max3_u32 v8, v18, v19, v20')
        a('v_max_u32 v8, v8, v21')
        a('v_cmp_lt_u32 vcc, 10239, v8')
        Lok = NL('L_ok')
        a('s_waitcnt lgkmcnt(0)')
        for c in range(4): a('v_lshlrev_b32 v%d, 16, v%d' % (Y[c], Y[c]))
        a('s_cbranch_vccz %s' % Lok)
        for c in range(4):
            L1, L2 = NL('L_fb'), NL('L_fe')
            a('v_cmp_lt_u32 vcc, 10239, v%d' % (18 + c))
            a('s_and_b32 s78, vcc_lo, 0x7f7f7f7f')
            a.label(L1)
            a('s_cmp_eq_u32 s78, 0')
            a('s_cbranch_scc1 %s' % L2)
            a('s_ff1_i32_b32 s80, s78')
            a('s_bitset0_b32 s78, s80')
            a('v_readlane_b32 s76, v%d, s80' % (18 + c))
            a('s_call_b64 %s, L_eval' % RET_F)
            a('s_mov_b32 m0, s80')
            a('s_nop 0')
            a('v_writelane_b32 v%d, s76, m0' % Y[c])
            a('s_branch %s' % L1)
            a.label(L2)
        if layer == 0:
            load_w(8192)
            a('s_waitcnt vmcnt(0)')
        a.label(Lok)
        stamp(21 + layer)
        for c in (0, 2): a('v_pk_add_f32 %s, %s, %s' % (vr(10 + c, 2), vr(10 + c, 2), vr(22 + c, 2)))

    def prefetch01():
        Ln = NL('L_n')
        a('s_add_u32 %s, %s, 0x4000000' % (sTB, sTB))
        a('s_cmp_gt_u32 %s, 5' % sB)
        a('s_cbranch_scc1 %s' % Ln)
        for i in range(cfg.npre): issue_group(i)
        a.label(Ln)
    mixer_step(0, prefetch01)
    bf16r(vl(10, 14))
    dbg_quad(1)
    Ln = NL('L_n')
    a('s_cmp_lg_u32 %s, %s' % (sFIN, sB))
    a('s_cbranch_scc1 %s' % Ln)
    a('s_mov_b32 exec_hi, 0')
    a('buffer_store_dwordx4 v[10:13], v7, %s, %s offen sc1' % (SRD_W, sU[8]))
    a('s_mov_b64 exec, -1')
    a.label(Ln)
    row_stats()
    ln_finish('v26', 'v27', 'v28', 'v29')
    ln_vec(10, 14, 4, 28, final_round=False)
    a('v_cvt_pk_bf16_f32 v18, v14, v15')
    a('v_cvt_pk_bf16_f32 v19, v16, v17')
    a('s_lshl_b32 %s, %s, 8' % (sU[2], sW))
    a('v_lshl_add_u32 v22, v0, 3, %s' % sU[2])
    a('v_cndmask_b32 v18, 0, v18, vcc')
    a('v_cndmask_b32 v19, 0, v19, vcc')
    a('v_and_b32 v23, 48, v0')
    a('v_add_u32 v23, %s, v23' % sU[2])
    a('s_mov_b32 exec_hi, 0')
    a('ds_write_b64 v22, v[18:19] offset:%d' % L_NST)
    a('s_mov_b64 exec, -1')
    for k in range(4): a('ds_read_b128 %s, v23 offset:%d' % (vr(6 + 4 * k, 4), L_NST + 64 * k))
    slot_off(sU[0], QB_OFF + 0x20000)
    a('s_add_u32 %s, %s, %s' % (sU[0], sU[0], sSLOT))
    a('s_lshl_b32 %s, %s, 7' % (sU[2], sW))
    a('v_lshl_add_u32 v22, v0, 2, %s' % sU[2])
    for k in range(4):
        a('s_waitcnt lgkmcnt(%d)' % (3 - k))
        for ct in range(2):
            acc = vr(24 + 4 * ct, 4)
            a('v_mfma_f32_16x16x32_bf16 %s, %s, %s, %s' % (acc, vr(6 + 4 * k, 4), vr(WR + 16 * ct + 4 * k, 4), '0' if k == 0 else acc))
    a('s_mov_b64 exec, 0xffff')
    a('v_add_u32 v22, %d, v22' % L_QP)
    a('ds_write2_b32 v22, v24, v28 offset0:0 offset1:16')
    a('s_mov_b64 exec, -1')
    a('v_lshlrev_b32 v10, 2, v0')
    a('v_and_b32 v11, 124, v10')
    a('v_add_u32 v11, %d, v11' % L_QP)
    barrier()
    Lo = NL('L_o')
    only_wave(0, Lo)
    a('ds_read2_b32 v[12:13], v11 offset0:0 offset1:32')
    a('ds_read2_b32 v[14:15], v11 offset0:64 offset1:96')
    a('s_waitcnt lgkmcnt(0)')
    a('v_pk_add_f32 v[12:13], v[12:13], v[14:15]')
    a('v_add_f32 v12, v12, v13')
    a('v_cvt_pk_bf16_f32 v11, v12, v12')
    a('v_lshl_or_b32 v11, v11, 16, 1')
    a('s_mov_b32 exec_hi, 0')
    lstore('buffer_store_dword v11, v10, %s, %s offen' % (SRD_W, sU[0]))
    a('s_mov_b64 exec, -1')
    stamp(17)
    q_fetch(1, sB)
    a.label(Lo)
    q_addr(1, 'v9')
    barrier()
    stamp(4)
    def more(groups):
        if not groups: return
        Ln = NL('L_n')
        a('s_cmp_gt_u32 %s, 5' % sB)
        a.nofence('s_cbranch_scc1 %s' % Ln)
        for i in groups: issue_group(i)
        a.label(Ln)
    for s in range(4): a('ds_read_b128 %s, v9 offset:%d' % (vr(P0 + 4 * s, 4), L_QS + 1024 + 64 * s))
    more(range(cfg.npre, 4))
    for s in range(8):
        a('s_waitcnt lgkmcnt(%d)' % (3 if s < 5 else 7 - s))
        f = P0 + 4 * (s & 3)
        for t in range(8):
            acc = vr(S0 + 4 * t, 4)
            a('v_mfma_f32_16x16x32_bf16 %s, %s, %s, %s' % (acc, hreg(t, 4 * s, 4), vr(f, 4), '0' if s == 0 else acc))
        if s < 4: a('ds_read_b128 %s, v9 offset:%d' % (vr(f, 4), L_QS + 1024 + 64 * (s + 4)))
    a('s_waitcnt vmcnt(8)')
    move(0)
    a('s_waitcnt lgkmcnt(0)')
    more((4, 5))
    softmax()
    a('s_waitcnt vmcnt(8)')
    move(1)
    pv = PV()
    pv.lds_tile(6)
    more((6, 7))
    pv.lds_tile(7)
    for t in range(3): pv.reg_tile(t)
    more((8, 9))
    for t in range(3, 6): pv.reg_tile(t)
    more((10, 11))
    combine(1)
    stamp(6)
    a('s_add_u32 %s, %s, 2' % (sB, sB))
    a('s_cmp_lt_u32 %s, 8' % sB)
    a('s_cbranch_scc1 L_main')

    o_and_r(True)
    a('s_cmp_gt_u32 %s, 7' % sFIN)
    a('s_cbranch_scc1 L_exit')
    a('s_mov_b32 %s, %s' % (sB, sFIN))
    mixer_step(1)
    a('v_cvt_pk_bf16_f32 v14, v10, v11')
    a('v_cvt_pk_bf16_f32 v15, v12, v13')
    col_quad('v8', 'v9')
    a('s_mul_i32 %s, %s, 896' % (sU[1], sB))
    a('s_mul_i32 %s, %s, 224' % (sU[2], sW))
    a('s_add_u32 %s, %s, %s' % (sU[1], sU[1], sU[2]))
    a('v_lshl_add_u32 v8, v8, 1, %s' % sU[1])
    a('s_mov_b32 exec_hi, 0')
    a('s_mov_b32 exec_lo, 0x7f7f7f7f')
    a('global_store_dwordx2 v8, v[14:15], %s' % S_OUT)
    a('s_mov_b64 exec, -1')
    stamp(18)
    a.label('L_exit')
    a('s_endpgm')

    a.label('L_eval')
    gelu_consts(62)
    a('s_add_u32 s76, s76, %d' % (cfg.ELO * 512))
    a('s_lshl_b32 s77, s76, 30')
    a('s_and_b32 s77, s77, 0x80000000')
    a('s_lshr_b32 s76, s76, 2')
    a('s_lshl_b32 s76, s76, 16')
    a('s_or_b32 s76, s76, s77')
    a('v_mov_b32 v32, s76')
    a('v_mov_b32 v34, 0\nv_mov_b32 v35, 0')
    a('v_lshlrev_b32 v33, 3, v0')
    a('s_mov_b32 s81, 0')
    a.label('L_ev')
    a('global_load_dwordx2 v[36:37], v33, %s' % S_W1)
    a('global_load_dwordx2 v[38:39], v33, %s' % S_B1)
    a('global_load_dwordx2 v[40:41], v33, %s' % S_W2)
    a('s_waitcnt vmcnt(0)')
    for i in range(2):
        a('v_lshlrev_b32 v%d, 16, v%d' % (42 + 2 * i, 36 + i))
        a('v_and_b32 v%d, 0xffff0000, v%d' % (43 + 2 * i, 36 + i))
        a('v_lshlrev_b32 v%d, 16, v%d' % (46 + 2 * i, 38 + i))
        a('v_and_b32 v%d, 0xffff0000, v%d' % (47 + 2 * i, 38 + i))
    gelu_pairs('v[32:33]', [42, 44], [46, 48], [40, 41], [50, 52], [54, 56], [34, 35], 62, False)
    a('v_add_u32 v33, 512, v33')
    a('s_add_u32 s81, s81, 1')
    a('s_cmp_lt_u32 s81, 7')
    a('s_cbranch_scc1 L_ev')
    mix_finish([34, 35], 's76')
    a('s_setpc_b64 %s' % RET_F)

    a.raw('.section .rodata,"a"')
    a.raw('.p2align 6')
    a.raw('.amdhsa_kernel %s_kernel' % NAME)
    a.raw('  .amdhsa_next_free_vgpr 512')
    a.raw('  .amdhsa_next_free_sgpr %d' % NSGPR)
    a.raw('  .amdhsa_accum_offset 256')
    a.raw('  .amdhsa_group_segment_fixed_size 0')
    a.raw('  .amdhsa_kernarg_size 104')
    a.raw('  .amdhsa_user_sgpr_count 2')
    a.raw('  .amdhsa_user_sgpr_kernarg_segment_ptr 1')
    a.raw('  .amdhsa_system_sgpr_workgroup_id_x 1')
    a.raw('  .amdhsa_float_denorm_mode_32 3')
    a.raw('.end_amdhsa_kernel')
    return a

if __name__ == '__main__':
    cfg = Cfg()
    out = 'cdna_kernels/%s.s' % NAME
    for arg in sys.argv[1:]:
        k, val = arg.split('=')
        if k == 'out': out = val
        else: setattr(cfg, k, int(val))
    a = gen(cfg)
    open(out, 'w').write(a.text())
    print('wrote', out, a.count, 'instructions')
```

```python
import sys, struct
from asmlib import Asm

NAME = "interleave_layers__gqa_block_cached__mixer_token_mlp__decode"
HEADER = open('cdna_kernels/%s.s.ref' % NAME).read().split('; Override launch')[0]

def f32(x): return '0x%08x' % struct.unpack('<I', struct.pack('<f', x))[0]

class Cfg:
    AH = 12
    IP = 150
    stamps = 0
    ph = -1
    wwarm = 1
    touch = 0
    pcyc = 0
    vdef = 0
    kdef = 0
    pre1 = 8
    late = 0
    pev = -1
    pb = 0
    warm = 0
    TJ = 3
    b1 = 6
    IP1 = 150
    slow = 0
    nostore = 0
    ksw = 0
    rot = 0
    masked = 1
    wpol = ''
    nochain = 0
    ncw = 0
    ELO = 111
    force_global = 0
    tmo = 2000000
    dX = 4
    npre = 16
    bo = 0
    bx = 0
    IGO = 6
    ITK = 0
    WS = 2
    bpre = 2

OB_OFF, OB_SET = 0x0, 0x80000
ON_OFF = 0x100000
LM_OFF = 0x110000
QB_OFF = 0x220000
XP_OFF = 0x260000
TB_OFF = 0x2A0000
XS_OFF = 0x2A8000
TK_OFF = 0x2AD000
XDBG_OFF = 0x2B0000
DBG_OFF = 0x400000
WS_BYTES = 0x1000000
L_TBL = 0
L_ML = 10240
L_MX = L_ML + 64
L_QP = L_MX + 128
L_MISC = L_QP + 512
L_NST = 11264
L_QS = 12288
L_COMB = 14336
L_Q1 = 22528
L_OS = 26624
L_YP = 28672
L_RING = 29696
SLOT = [1, 0, 1, 0, 2, 3, 1, 0, 2, 3, 1, 0, 1, 0, 2, 3]
def slot_lim(done):
    for n in range(done + 1, 16):
        if any(SLOT[m] == SLOT[n] for m in range(done + 1, n)): return 8 * n
    return 128
LDS_BYTES = L_RING + 131072
assert L_MISC + 64 <= L_NST

S_X, S_K, S_V, S_WQ, S_WO, S_W1, S_B1, S_W2, S_B2, S_OUT, S_DBG, S_WS = \
    's[16:17]', 's[18:19]', 's[20:21]', 's[22:23]', 's[24:25]', 's[28:29]', 's[30:31]', 's[32:33]', 's[34:35]', 's[36:37]', 's[38:39]', 's[40:41]'
SRD_K, SRD_V, SRD_W = 's[4:7]', 's[8:11]', 's[12:15]'
sFIN, sXCC = 's26', 's27'
sW, sH, sSP, sWG, sGRP = 's42', 's43', 's44', 's45', 's46'
sTB, sRING, sWQO, sLOC = 's47', 's48', 's49', 's50'
sGH, sYREC, sSLOT = 's51', 's52', 's53'
SRD_O = 's[92:95]'
sB, sTAG, sTMO, sB2V, sC, sPASS, sXN = 's54', 's55', 's56', 's57', 's58', 's59', 's60'
sWOO = 's61'
sTKO, sTKP, sJ, sFAST = 's69', 's70', 's71', 's72'
RET_P = 's[74:75]'
RET_A, RET_F = 's[62:63]', 's[64:65]'
sSTAMP, sSTO = 's[66:67]', 's68'
sU = ['s%d' % i for i in range(76, 92)]
NSGPR = 102
vBK, vBV, vKA, vVA = 'v1', 'v2', 'v4', 'v5'

def home(idx):
    return ('a', idx * 32) if idx < 8 else ('v', 64 + (idx - 8) * 32)
def hreg(idx, off, n):
    f, b = home(idx)
    return '%s[%d:%d]' % (f, b + off, b + off + n - 1)
def vr(i, n): return 'v[%d:%d]' % (i, i + n - 1)
def vl(lo, hi): return ['v%d' % i for i in range(lo, hi)]

def gen(cfg):
    a = Asm()
    a.raw(HEADER.rstrip())
    a.raw('; @launch grid=(256,1,1) block=(256,1,1) lds=%d' % LDS_BYTES)
    a.raw('.amdgcn_target "amdgcn-amd-amdhsa--gfx950"')
    a.raw('.text')
    a.raw('.globl %s_kernel' % NAME)
    a.raw('.p2align 8')
    a.raw('.type %s_kernel,@function' % NAME)
    a.label('%s_kernel' % NAME)
    DPP = 'row_mask:0xf bank_mask:0xf'
    NL = a.newlabel

    def stamp(ev):
        if ev == cfg.pev:
            L = NL('L_pb')
            a('s_cmp_lg_u32 %s, %d' % (sB, cfg.pb))
            a('s_cbranch_scc1 %s' % L)
            a('s_memtime s[66:67]' if cfg.pcyc else 's_memrealtime s[66:67]')
            a('s_waitcnt lgkmcnt(0)')
            a('s_sub_u32 s98, s66, %s' % ('s100' if cfg.pcyc else 's96'))
            if cfg.pcyc: a('s_lshr_b32 s98, s98, 4')
            a.label(L)
        if not cfg.stamps: return
        if cfg.stamps == 2 and ev not in (0, 29, 3, 4, 18): return
        inj, a.inject = a.inject, None
        stamp_(ev)
        a.inject = inj
    def stamp_(ev):
        a('s_memrealtime %s' % sSTAMP)
        a('s_lshl_b32 %s, %s, 7' % (sU[15], sB))
        a('s_add_u32 %s, %s, %s' % (sU[15], sU[15], sSTO))
        a('s_waitcnt lgkmcnt(0)')
        a('v_mov_b32 v3, s66')
        a('s_mov_b64 exec, 1')
        a('buffer_store_dword v3, v0, %s, %s offen offset:%d' % (SRD_W, sU[15], 4 * ev))
        a('s_mov_b64 exec, -1')
    def tmo_check():
        a('s_sub_u32 %s, %s, 1' % (sTMO, sTMO))
        a('s_cbranch_scc1 L_exit')
    def barrier():
        a('s_waitcnt lgkmcnt(0)')
        a('s_barrier')
    def tagcheck(regs, tag, tmp, mask=15):
        a('v_xor_b32 %s, %s, %s' % (tmp, tag, regs[0]))
        for r in regs[1:]:
            a('v_bitop3_b32 %s, %s, %s, %s bitop3:0xf6' % (tmp, tmp, r, tag))
        a('v_and_b32 %s, %d, %s' % (tmp, mask, tmp))
        a('v_cmp_ne_u32 vcc, 0, %s' % tmp)
    def poll(issue, regs, tag, tmp, mask=15, backoff=None):
        Lr, Lf = NL('L_pr'), NL('L_pf')
        backoff = cfg.bo if backoff is None else backoff
        if backoff or cfg.masked: a('s_branch %s' % Lf)
        a.label(Lr)
        if backoff: a('s_sleep %d' % backoff)
        if cfg.masked: a('s_mov_b64 exec, vcc')
        a.label(Lf)
        issue()
        if cfg.masked: a('s_mov_b64 exec, -1')
        tmo_check()
        a('s_waitcnt vmcnt(0)')
        tagcheck(regs, tag, tmp, mask)
        a.nofence('s_cbranch_vccnz %s' % Lr)
    def lstore(*texts):
        Lg, Le = NL('L_g'), NL('L_e')
        a('s_cmp_eq_u32 %s, 0' % sLOC)
        a('s_cbranch_scc1 %s' % Lg)
        for t in texts: a(t)
        a('s_branch %s' % Le)
        a.label(Lg)
        for t in texts: a(t + ' sc1' if t.startswith('buffer') else t)
        a.label(Le)
    def only_wave(w, Lskip):
        a('s_cmp_lg_u32 %s, %d' % (sW, w))
        a('s_cbranch_scc1 %s' % Lskip)

    STEPS = ['quad_perm:[1,0,3,2] ' + DPP, 'quad_perm:[2,3,0,1] ' + DPP, 'row_half_mirror ' + DPP, 'row_mirror ' + DPP,
             'row_bcast:15 row_mask:0xa bank_mask:0xf', 'row_bcast:31 row_mask:0xc bank_mask:0xf']
    ROR8 = 'row_ror:8 ' + DPP
    def wave_sum(regs, nsteps=6):
        for m in STEPS[:nsteps]:
            for r in regs: a('v_add_f32_dpp %s, %s, %s %s' % (r, r, r, m))
    def xrow(op, regs, temps, swaps=('v_permlane16_swap_b32', 'v_permlane32_swap_b32')):
        for sw in swaps:
            for r, t in zip(regs, temps): a('v_mov_b32 %s, %s' % (t, r))
            for r, t in zip(regs, temps): a('%s %s, %s' % (sw, r, t))
            for r, t in zip(regs, temps): a('%s %s, %s, %s' % (op, r, r, t))
    def bf16r(regs):
        n = len(regs)
        for i in range(0, n - 1, 2): a('v_cvt_pk_bf16_f32 %s, %s, %s' % (regs[i + 1], regs[i], regs[i + 1]))
        for i in range(0, n - 1, 2):
            a('v_lshlrev_b32 %s, 16, %s' % (regs[i], regs[i + 1]))
            a('v_and_b32 %s, 0xffff0000, %s' % (regs[i + 1], regs[i + 1]))
        if n & 1:
            x = regs[-1]
            a('v_cvt_pk_bf16_f32 %s, %s, %s' % (x, x, x))
            a('v_lshlrev_b32 %s, 16, %s' % (x, x))
    def ln_finish(mean, var, mb, r):
        a('v_cvt_pk_bf16_f32 %s, %s, %s' % (r, mean, var))
        a('v_lshlrev_b32 %s, 16, %s' % (mb, r))
        a('v_and_b32 %s, 0xffff0000, %s' % (r, r))
        a('v_add_f32 %s, %s, %s' % (r, f32(1e-5), r))
        bf16r([r])
        a('v_sqrt_f32 %s, %s' % (r, r))
        bf16r([r])
        a('v_rcp_f32 %s, %s' % (r, r))
    def ln_vec(src, dst, n, mb, final_round=True):
        for c in range(0, n, 2): a('v_pk_add_f32 %s, %s, %s op_sel_hi:[1,0] neg_lo:[0,1] neg_hi:[0,1]' % (vr(dst + c, 2), vr(src + c, 2), vr(mb, 2)))
        bf16r(vl(dst, dst + n))
        for c in range(0, n, 2): a('v_pk_mul_f32 %s, %s, %s op_sel:[0,1] op_sel_hi:[1,1]' % (vr(dst + c, 2), vr(dst + c, 2), vr(mb, 2)))
        if final_round: bf16r(vl(dst, dst + n))
    K0 = -2.0 * 0.7978845608028654 * 1.4426950408889634
    def gelu_consts(kv):
        a('s_mov_b32 s82, %s' % f32(K0 * 0.044715))
        a('s_mov_b32 s83, s82')
        a('v_mov_b32 v%d, %s' % (kv, f32(K0)))
        a('v_mov_b32 v%d, v%d' % (kv + 1, kv))
    def gelu_pairs(hreg2, W1, B1, W2, U, Z, acc, kv, first):
        n = len(W1)
        def rnd():
            for i in range(n): a('v_cvt_pk_bf16_f32 v%d, v%d, v%d' % (U[i] + 1, U[i], U[i] + 1))
            for i in range(n): a('v_lshlrev_b32 v%d, 16, v%d' % (U[i], U[i] + 1))
            for i in range(n): a('v_and_b32 v%d, 0xffff0000, v%d' % (U[i] + 1, U[i] + 1))
        for i in range(n): a('v_pk_mul_f32 %s, %s, %s op_sel_hi:[0,1]' % (vr(U[i], 2), hreg2, vr(W1[i], 2)))
        rnd()
        for i in range(n): a('v_pk_add_f32 %s, %s, %s' % (vr(U[i], 2), vr(U[i], 2), vr(B1[i], 2)))
        rnd()
        for i in range(n): a('v_pk_mul_f32 %s, %s, %s' % (vr(Z[i], 2), vr(U[i], 2), vr(U[i], 2)))
        for i in range(n): a('v_pk_fma_f32 %s, %s, s[82:83], %s' % (vr(Z[i], 2), vr(Z[i], 2), vr(kv, 2)))
        for i in range(n): a('v_pk_mul_f32 %s, %s, %s' % (vr(Z[i], 2), vr(Z[i], 2), vr(U[i], 2)))
        for i in range(n):
            for e in range(2): a('v_exp_f32 v%d, v%d' % (Z[i] + e, Z[i] + e))
        for i in range(n): a('v_pk_add_f32 %s, %s, 1.0 op_sel_hi:[1,0]' % (vr(Z[i], 2), vr(Z[i], 2)))
        for i in range(n):
            for e in range(2): a('v_rcp_f32 v%d, v%d' % (Z[i] + e, Z[i] + e))
        for i in range(n): a('v_pk_mul_f32 %s, %s, %s' % (vr(U[i], 2), vr(U[i], 2), vr(Z[i], 2)))
        for i in range(n): a('v_cvt_pk_bf16_f32 v%d, v%d, v%d' % (U[i], U[i], U[i] + 1))
        for i in range(n):
            a('v_dot2_f32_bf16 v%d, v%d, v%d, %s' % (acc[i & 1], U[i], W2[i], '0' if (first and i < 2) else 'v%d' % acc[i & 1]))
    def mix_finish(acc, dst):
        if len(acc) > 1: a('v_add_f32 v%d, v%d, v%d' % (acc[0], acc[0], acc[1]))
        wave_sum(['v%d' % acc[0]])
        bf16r(['v%d' % acc[0]])
        a('v_add_f32 v%d, %s, v%d' % (acc[0], sB2V, acc[0]))
        bf16r(['v%d' % acc[0]])
        a('v_readlane_b32 %s, v%d, 63' % (dst, acc[0]))
    def slot_off(dst, base, b=sB):
        a('s_lshl_b32 %s, %s, 14' % (dst, b))
        a('s_add_u32 %s, %s, 0x%x' % (dst, dst, base))

    def issue_piece(n, jj, tb=sTB):
        k = n & 7
        x = k * 0x8000 + jj * (0x1020 if (n < 8 and not cfg.ksw) else 0x1080)
        a('s_add_u32 m0, %s, %d' % (sRING, SLOT[n] * 8192 + jj * 1024))
        a('v_xor_b32 v3, 0x%x, %s' % (x, vBK if n < 8 else vBV))
        a('buffer_load_dwordx4 v3, %s, %s offen %s lds' % (SRD_K if n < 8 else SRD_V, tb, '' if ((n >= 8 and cfg.vdef) or (5 < n < 8 and cfg.kdef)) else 'nt'))
    def issue_group(i, tb=sTB):
        for j in range(4): issue_piece(i >> 1, (i & 1) * 4 + j, tb)
    WR = 32
    def wq_dma(slot):
        a('v_lshrrev_b32 v6, 2, v0')
        a('v_lshlrev_b32 v6, 13, v6')
        a('v_and_b32 v7, 3, v0')
        a('v_lshl_add_u32 v6, v7, 4, v6')
        a('v_add_u32 v6, %s, v6' % sWQO)
        for i in range(7):
            a('s_add_u32 m0, %s, %d' % (sRING, slot * 8192 + 1024 * i))
            if i: a('v_add_u32 v6, %d, v6' % (16 * 8192))
            a('global_load_lds_dwordx4 v6, %s %s' % (S_WQ, cfg.wpol))
    def wo_dma(slot):
        a('v_lshrrev_b32 v6, 2, v0')
        a('v_mul_u32_u24 v6, 896, v6')
        a('v_and_b32 v7, 3, v0')
        a('v_lshl_add_u32 v6, v7, 4, v6')
        for i in range(8):
            a('s_add_u32 m0, %s, %d' % (sRING, slot * 8192 + 1024 * i))
            if i: a('v_add_u32 v6, %d, v6' % (16 * 896))
            a('buffer_load_dwordx4 v6, %s, %s offen %s lds' % (SRD_O, sWOO, cfg.wpol))
    def wq_frags(slot, r0, kstride=1792):
        a('v_lshrrev_b32 v6, 4, v0')
        a('v_bfe_u32 v7, v0, 2, 2')
        a('v_lshl_add_u32 v6, v6, 3, v7')
        a('v_and_b32 v7, 3, v0')
        a('v_lshlrev_b32 v7, 3, v7')
        a('v_lshl_add_u32 v6, v6, 6, v7')
        a('v_add_u32 v6, %s, v6' % sRING)
        for ct in range(2):
            for k in range(4):
                r = r0 + 16 * ct + 4 * k
                a('ds_read_b64_tr_b16 %s, v6 offset:%d' % (vr(r, 2), slot * 8192 + kstride * k + 32 * ct))
                a('ds_read_b64_tr_b16 %s, v6 offset:%d' % (vr(r + 2, 2), slot * 8192 + kstride * k + 32 * ct + 256))
    def wq_mask(r0, ks):
        a('s_mov_b32 vcc_lo, -1')
        a('s_mov_b32 vcc_hi, 0x0000ffff')
        a('s_waitcnt lgkmcnt(0)')
        for ct in range(2):
            for k in ks:
                for e in (2, 3):
                    r = r0 + 16 * ct + 4 * k + e
                    a('v_cndmask_b32 v%d, 0, v%d, vcc' % (r, r))
    def wo_frags(tail):
        wq_frags(0, WR, 2048)
        if not tail:
            a('s_waitcnt lgkmcnt(0)')
            wq_dma(0)
    def pieces(upto):
        a('s_mov_b32 %s, %s' % (sU[13], upto))
        a.nofence('s_call_b64 %s, L_pieces' % RET_P)
    def tk_load(reg): a('buffer_load_dword %s, off, %s, %s sc1' % (reg, SRD_W, sTKP))
    items = [(kg, cg) for kg in range(4) for cg in range(4)]
    def v_read(dst, kg, cg, slot, ad):
        a('ds_read_b64_tr_b16 %s, %s offset:%d' % (dst, ad[(cg & 1) + 2 * (kg >> 1)], slot * 8192 + ((cg >> 1) ^ (kg & 1)) * 256 + kg * 2048))
    def v_addrs():
        a('v_xor_b32 v6, 128, %s' % vVA)
        a('v_xor_b32 v7, 0x240, %s' % vVA)
        a('v_xor_b32 v8, 0x2c0, %s' % vVA)
        return [vVA, 'v6', 'v7', 'v8']
    def move(n):
        slot = SLOT[n]
        if n < 8 and cfg.ksw:
            for st in range(8):
                if st: a('v_xor_b32 v%d, %d, %s' % (6 + (st & 1), 64 * st, vKA))
                a('ds_read_b128 %s, %s offset:%d' % (hreg(n, 4 * st, 4), 'v%d' % (6 + (st & 1)) if st else vKA, slot * 8192))
        elif n < 8:
            a('v_xor_b32 v6, 64, %s' % vKA)
            a('v_xor_b32 v7, 128, %s' % vKA)
            a('v_xor_b32 v8, 192, %s' % vKA)
            ad = [vKA, 'v6', 'v7', 'v8']
            for st in range(8):
                a('ds_read_b128 %s, %s offset:%d' % (hreg(n, 4 * st, 4), ad[st & 3], slot * 8192 + (st >> 2) * 256))
        else:
            ad = v_addrs()
            for kg, cg in items: v_read(hreg(n, (kg * 4 + cg) * 2, 2), kg, cg, slot, ad)

    S0, P0, ACC, VT = 12, 44, 12, 28
    QF = 64 + 5 * 32
    def q_addr(layer, reg):
        a('v_and_b32 %s, 1, v0' % reg)
        a('v_and_b32 v3, 48, v0')
        a('v_lshl_add_u32 %s, %s, 9, v3' % (reg, reg))
    def softmax():
        S = vl(S0, S0 + 32)
        a('v_max3_f32 v10, %s, %s, %s' % tuple(S[0:3]))
        a('v_max3_f32 v11, %s, %s, %s' % tuple(S[3:6]))
        for i in range(6, 30, 4):
            a('v_max3_f32 v10, v10, %s, %s' % (S[i], S[i + 1]))
            a('v_max3_f32 v11, v11, %s, %s' % (S[i + 2], S[i + 3]))
        a('v_max3_f32 v10, v10, %s, %s' % (S[30], S[31]))
        a('v_max_f32 v10, v10, v11')
        xrow('v_max_f32', ['v10'], ['v11'])
        a('v_mul_f32 v10, %s, v10' % sC)
        a('v_mov_b32 v60, %s' % sC)
        for i in range(0, 32, 2):
            a('v_pk_fma_f32 %s, %s, v[60:61], v[10:11] op_sel_hi:[1,0,0] neg_lo:[0,0,1] neg_hi:[0,0,1]' % (vr(S0 + i, 2), vr(S0 + i, 2)))
        for s in S: a('v_exp_f32 %s, %s' % (s, s))
        for i in range(16): a('v_cvt_pk_bf16_f32 v%d, v%d, v%d' % (P0 + i, S0 + 2 * i, S0 + 2 * i + 1))
        for n in (16, 8, 4, 2):
            for i in range(0, n, 2): a('v_pk_add_f32 %s, %s, %s' % (vr(S0 + i, 2), vr(S0 + i, 2), vr(S0 + n + i, 2)))
        a('v_add_f32 v11, v%d, v%d' % (S0, S0 + 1))
        xrow('v_add_f32', ['v11'], ['v%d' % S0])
    class PV:
        def __init__(self): self.first = [True] * 4
        def one(self, t, kg, cg, breg):
            acc = vr(ACC + 4 * cg, 4)
            a('v_mfma_f32_4x4x4_16b_bf16 %s, %s, %s, %s cbsz:4 abid:%d' %
              (acc, vr(P0 + 2 * t, 2), breg, '0' if self.first[cg] else acc, 4 * kg))
            self.first[cg] = False
        def reg_tile(self, t):
            for kg, cg in items: self.one(t, kg, cg, hreg(8 + t, (kg * 4 + cg) * 2, 2))
        def lds_tile(self, t):
            slot = SLOT[8 + t]
            ad = v_addrs()
            for i in range(8): v_read(vr(VT + 2 * i, 2), items[i][0], items[i][1], slot, ad)
            for i in range(16):
                a('s_waitcnt lgkmcnt(%d)' % (7 if i < 9 else 15 - i))
                self.one(t, items[i][0], items[i][1], vr(VT + 2 * (i & 7), 2))
                if i < 8: v_read(vr(VT + 2 * i, 2), items[i + 8][0], items[i + 8][1], slot, ad)

    a('s_cmp_ge_u32 s2, 256')
    a('s_cbranch_scc1 L_exit')
    if cfg.warm:
        a('s_getpc_b64 s[96:97]')
        a('v_lshlrev_b32 v2, 7, v0')
        a('v_add_u32 v3, 32768, v2')
        a('v_min_u32 v3, L_code_end-%s_kernel-256, v3' % NAME)
        a('v_min_u32 v2, L_code_end-%s_kernel-256, v2' % NAME)
        a('global_load_dword v61, v2, s[96:97]')
        a('global_load_dword v61, v3, s[96:97]')
    if cfg.pev >= 0:
        a('s_memrealtime s[96:97]')
        a('s_memtime s[100:101]')
        a('s_mov_b32 s98, 0')
    a('s_load_dwordx2 s[4:5], s[0:1], 8')
    a('s_load_dwordx16 s[16:31], s[0:1], 0')
    a('s_load_dwordx8 s[32:39], s[0:1], 64')
    a('s_load_dwordx2 s[40:41], s[0:1], 96')
    a('v_lshrrev_b32 v1, 6, v0')
    a('v_and_b32 v0, 63, v0')
    a('v_readfirstlane_b32 %s, v1' % sW)
    a('s_and_b32 %s, s2, 7' % sH)
    a('s_bfe_u32 %s, s2, 0x40003' % sSP)
    a('s_lshr_b32 %s, s2, 7' % sGRP)
    a('v_lshrrev_b32 v6, 5, v0')
    a('v_and_b32 v7, 31, v0')
    a('v_xor_b32 v8, v7, v6')
    a('v_lshlrev_b32 v8, 4, v8')
    a('v_lshl_add_u32 %s, v6, 9, v8' % vBK)
    a('s_lshl3_add_u32 %s, %s, %s' % (sGH, sGRP, sH))
    a('s_lshl4_add_u32 %s, %s, %s' % (sTB, sGH, sSP))
    a('s_lshl_b32 %s, %s, 18' % (sTB, sTB))
    a('s_lshl_b32 %s, %s, 10' % (sU[0], sW))
    a('s_add_u32 %s, %s, %s' % (sTB, sTB, sU[0]))
    a('s_lshl_b32 %s, %s, 15' % (sRING, sW))
    a('s_add_u32 %s, %s, %d' % (sRING, sRING, L_RING))
    a('s_mov_b32 s6, 0x10000000')
    a('s_mov_b32 s7, 0x00020000')
    assert not cfg.ksw and not cfg.rot
    Ln = NL('L_n')
    a('s_cmp_lg_u32 %s, 0' % sGRP)
    a('s_waitcnt lgkmcnt(0)')
    a('s_cbranch_scc1 %s' % Ln)
    for i in range(2): issue_group(i)
    a.label(Ln)
    a('s_mov_b32 %s, s2' % sWG)
    a('s_mov_b32 s10, 0x10000000')
    a('s_mov_b32 s11, 0x00020000')
    a('s_mov_b32 s14, 0x%x' % WS_BYTES)
    a('s_mov_b32 s15, 0x00020000')
    a('v_lshlrev_b32 v8, 2, v6')
    a('v_xor_b32 v8, v7, v8')
    a('v_lshlrev_b32 v8, 4, v8')
    a('v_lshl_add_u32 %s, v6, 9, v8' % vBV)
    a('v_and_b32 v6, 15, v0')
    a('v_lshrrev_b32 v7, 4, v0')
    a('v_xor_b32 v8, v6, v7')
    a('v_lshlrev_b32 v8, 4, v8')
    a('v_lshl_add_u32 %s, v6, 9, v8' % vKA)
    a('v_add_u32 %s, %s, %s' % (vKA, sRING, vKA))
    a('v_lshrrev_b32 v8, 2, v6')
    a('v_bfe_u32 v9, v0, 1, 1')
    a('v_lshl_add_u32 v9, v7, 1, v9')
    a('v_lshlrev_b32 v7, 2, v8')
    a('v_xor_b32 v9, v9, v7')
    a('v_lshlrev_b32 v9, 4, v9')
    a('v_lshl_add_u32 v9, v8, 9, v9')
    a('v_and_b32 v7, 1, v0')
    a('v_lshl_add_u32 %s, v7, 3, v9' % vVA)
    a('v_add_u32 %s, %s, %s' % (vVA, sRING, vVA))
    if cfg.rot:
        a('s_mul_i32 %s, %s, %d' % (sU[0], sWG, cfg.rot))
        a('s_and_b32 %s, %s, 63' % (sU[0], sU[0]))
        a('s_lshl_b32 %s, %s, 12' % (sU[0], sU[0]))
        a('v_xor_b32 %s, %s, %s' % (vBK, sU[0], vBK))
        a('v_xor_b32 %s, %s, %s' % (vBV, sU[0], vBV))
    if cfg.ksw:
        a('v_mov_b32 %s, %s' % (vBK, vBV))
        a('v_bfe_u32 v6, v0, 1, 3')
        a('v_and_b32 v7, 1, v0')
        a('v_lshlrev_b32 v7, 9, v7')
        a('v_and_b32 v8, 48, v0')
        a('v_add_u32 v7, v7, v8')
        a('v_lshlrev_b32 v8, 7, v6')
        a('v_xor_b32 v7, v7, v8')
        a('v_bfe_u32 v8, v7, 9, 1')
        a('v_lshlrev_b32 v8, 6, v8')
        a('v_xor_b32 v7, v7, v8')
        a('v_lshl_add_u32 v7, v6, 10, v7')
        a('v_add_u32 %s, %s, v7' % (vKA, sRING))
    a('s_mov_b32 %s, %s' % (sB, sGRP))
    for r, val in ((sLOC, 0), (sTMO, cfg.tmo), (sXN, 0)):
        a('s_mov_b32 %s, %d' % (r, val))
    a('s_mov_b32 %s, %s' % (sC, f32(1.4426950408889634 / 16)))
    a('s_lshl_b32 %s, %s, 11' % (sSLOT, sH))
    a('s_lshl_b32 %s, %s, 7' % (sU[0], sSP))
    a('s_add_u32 %s, %s, %s' % (sSLOT, sSLOT, sU[0]))
    a('s_and_b32 %s, %s, 0x87' % (sU[1], sWG))
    a('s_lshl3_add_u32 %s, %s, %s' % (sGH, sGRP, sH))
    a('s_lshl_b32 %s, %s, 11' % (sYREC, sU[1]))
    a('s_add_u32 %s, %s, %s' % (sYREC, sYREC, sU[0]))
    a('s_lshl2_add_u32 %s, %s, %s' % (sU[10], sWG, sW))
    a('s_lshl2_add_u32 %s, %s, 0x%x' % (sTKO, sU[10], TK_OFF))
    a('s_xor_b32 %s, %s, 2048' % (sTKP, sTKO))
    a('s_lshl_b32 %s, %s, 9' % (sU[0], sH))
    a('s_lshl_b32 %s, %s, 5' % (sU[1], sSP))
    a('s_add_u32 %s, %s, %s' % (sU[2], sU[0], sU[1]))
    a('s_mul_i32 %s, %s, %d' % (sWQO, sW, 112 * 8192))
    a('s_lshl1_add_u32 %s, %s, %s' % (sWQO, sU[2], sWQO))
    a('s_lshl2_add_u32 %s, %s, %s' % (sWOO, sH, sW))
    a('s_mul_i32 %s, %s, %d' % (sWOO, sWOO, 128 * 896))
    a('s_mul_i32 %s, %s, 56' % (sU[1], sSP))
    a('s_add_u32 %s, %s, %s' % (sWOO, sWOO, sU[1]))
    a('s_mov_b32 s94, %d' % (4096 * 896))
    a('s_mov_b32 s95, 0x00020000')
    a('s_getreg_b32 %s, hwreg(HW_REG_XCC_ID)' % sU[14])
    a('s_waitcnt lgkmcnt(0)')
    a('s_and_b32 %s, %s, 7' % (sXCC, sU[14]))
    a('s_mov_b64 s[12:13], %s' % S_WS)
    a('s_mov_b64 s[8:9], %s' % S_V)
    a('s_mov_b64 s[92:93], %s' % S_WO)
    if cfg.stamps:
        a('s_lshl_b32 %s, %s, 11' % (sSTO, sU[10]))
        a('s_add_u32 %s, %s, 0x%x' % (sSTO, sSTO, DBG_OFF))
    stamp(0)
    Ln = NL('L_n')
    a('s_cmp_lg_u32 %s, 0' % sGRP)
    a('s_cbranch_scc1 %s' % Ln)
    issue_group(2)
    a.label(Ln)
    a('s_and_b32 %s, %s, 127' % (sU[0], sWG))
    a('s_mul_i32 %s, %s, 3856' % (sU[1], sU[0]))
    a('s_lshr_b32 %s, %s, 16' % (sU[1], sU[1]))
    a('s_mul_i32 %s, %s, 17' % (sU[2], sU[1]))
    a('s_lshl1_add_u32 %s, %s, %s' % (sU[1], sU[1], sGRP))
    a('s_cmp_eq_u32 %s, %s' % (sU[2], sU[0]))
    a('s_cselect_b32 %s, %s, 99' % (sFIN, sU[1]))
    def mixw_load():
        a('v_lshlrev_b32 v10, 3, v0')
        for k, ptr in enumerate((S_W1, S_B1, S_W2)):
            for i in range(7):
                a('global_load_dwordx2 %s, v10, %s offset:%d' % (vr(64 + 14 * k + 2 * i, 2), ptr, 512 * i))
    def mixw_unpack():
        for i in range(14):
            a('v_lshlrev_b32 v%d, 16, v%d' % (112 + 2 * i, 64 + i))
            a('v_and_b32 v%d, 0xffff0000, v%d' % (113 + 2 * i, 64 + i))
            a('v_lshlrev_b32 v%d, 16, v%d' % (140 + 2 * i, 78 + i))
            a('v_and_b32 v%d, 0xffff0000, v%d' % (141 + 2 * i, 78 + i))
    a('v_mov_b32 v10, 0')
    a('global_load_ushort v20, v10, %s' % S_B2)
    def arrive():
        Lsk = NL('L_sk')
        only_wave(3, Lsk)
        a('s_mul_i32 %s, %s, 6' % (sU[0], sXCC))
        a('s_lshl_b64 s[78:79], 1, %s' % sU[0])
        a('s_or_b32 s79, s79, 0x10000')
        a('v_mov_b32 v62, s78\nv_mov_b32 v63, s79')
        a('s_lshl_b32 %s, %s, 3' % (sU[0], sH))
        a('v_mov_b32 v10, %s' % sU[0])
        a('s_mov_b64 exec, 1')
        a('global_atomic_add_x2 v[62:63], v10, v[62:63], %s sc0 sc1' % S_DBG)
        a('s_mov_b64 exec, -1')
        a.label(Lsk)
    def raise_go():
        Lsk = NL('L_sk')
        only_wave(3, Lsk)
        a('v_readfirstlane_b32 s78, v62')
        a('v_readfirstlane_b32 s79, v63')
        a('s_lshr_b32 %s, s79, 16' % sU[0])
        a('s_cmp_eq_u32 %s, 31' % sU[0])
        a('s_cbranch_scc0 %s' % Lsk)
        a('s_mul_i32 %s, %s, 6' % (sU[0], sXCC))
        a('s_lshr_b64 s[78:79], s[78:79], %s' % sU[0])
        a('s_and_b32 %s, s78, 63' % sU[0])
        a('s_cmp_eq_u32 %s, 31' % sU[0])
        a('s_cselect_b32 %s, 3, 2' % sU[0])
        a('v_mov_b32 v11, %s' % sU[0])
        a('s_lshl_b32 %s, %s, 2' % (sU[0], sH))
        a('v_mov_b32 v10, %s' % sU[0])
        a('s_mov_b64 exec, 1')
        a('global_store_dword v10, v11, %s offset:128 sc1' % S_DBG)
        a('s_mov_b64 exec, -1')
        a.label(Lsk)
    a('s_cmp_lg_u32 %s, 0' % sGRP)
    a('s_cbranch_scc1 L_late')
    arrive()
    issue_group(3)
    a('s_waitcnt vmcnt(8)')
    move(0)
    a('s_waitcnt lgkmcnt(0)')
    for i in (4, 5): issue_group(i)
    a('s_waitcnt vmcnt(8)')
    move(1)
    a('v_lshlrev_b32 v20, 16, v20')
    a('v_readfirstlane_b32 %s, v20' % sB2V)
    raise_go()
    stamp(1)
    a('s_mov_b32 %s, 24' % sJ)
    a('s_waitcnt lgkmcnt(0)')
    a('s_branch L_main')

    a.label('L_late')
    a('v_min_u32 v10, 55, v0')
    a('s_mul_i32 %s, %s, 1792' % (sU[0], sW))
    a('v_lshl_add_u32 v10, v10, 4, %s' % sU[0])
    a('global_load_dwordx4 v[48:51], v10, %s' % S_X)
    a('global_load_dwordx4 v[52:55], v10, %s offset:896' % S_X)
    wq_dma(3)
    mixw_load()
    a('v_mov_b32 v12, 0\nv_mov_b32 v13, 0\nv_mov_b32 v14, 0\nv_mov_b32 v15, 0')
    a('v_lshlrev_b32 v11, 4, v0')
    a('v_lshrrev_b32 v10, 3, v0')
    a('v_lshlrev_b32 v10, 14, v10')
    a('v_and_b32 v16, 0x70, v11')
    a('v_add_u32 v10, v10, v16')
    a('s_lshl_b32 %s, %s, 17' % (sU[0], sW))
    a('s_add_u32 %s, %s, %s' % (sU[0], sU[0], sSLOT))
    a('s_add_u32 %s, %s, 0x%x' % (sU[0], sU[0], QB_OFF))
    Ln = NL('L_n')
    a('s_cmp_eq_u32 %s, 0' % sW)
    a('s_cbranch_scc1 %s' % Ln)
    a('buffer_store_dwordx4 v[12:15], v10, %s, %s offen sc1' % (SRD_W, sU[0]))
    a.label(Ln)
    a('s_and_b32 %s, %s, 1' % (sU[1], sW))
    a('s_lshr_b32 %s, %s, 1' % (sU[2], sW))
    a('s_lshl_b32 %s, %s, 7' % (sU[2], sU[2]))
    a('s_xor_b32 %s, %s, %s' % (sU[2], sU[2], sWG))
    a('s_lshl_b32 %s, %s, 11' % (sU[0], sU[2]))
    a('s_lshl_b32 %s, %s, 19' % (sU[3], sU[1]))
    a('s_add_u32 %s, %s, %s' % (sU[0], sU[0], sU[3]))
    for off in (0, 1024):
        a('buffer_store_dwordx4 v[12:15], v11, %s, %s offen offset:%d sc1' % (SRD_W, sU[0], off))
    a('s_lshl_b32 %s, %s, 14' % (sU[0], sW))
    a('s_add_u32 %s, %s, %s' % (sU[0], sU[0], sSLOT))
    a('s_lshr_b32 %s, %s, 4' % (sU[1], sU[0]))
    a('s_add_u32 %s, %s, 0x%x' % (sU[0], sU[0], ON_OFF))
    a('s_add_u32 %s, %s, 0x%x' % (sU[1], sU[1], LM_OFF))
    a('s_mov_b64 exec, 0xff')
    a('buffer_store_dwordx4 v[12:15], v11, %s, %s offen sc1' % (SRD_W, sU[0]))
    a('s_mov_b64 exec, 1')
    a('buffer_store_dwordx2 v[12:13], off, %s, %s sc1' % (SRD_W, sU[1]))
    a('s_mov_b64 exec, -1')
    a('s_and_b32 %s, %s, 511' % (sU[10], sU[10]))
    a('s_mul_i32 %s, %s, 40' % (sU[5], sU[10]))
    a('s_add_u32 %s, %s, 0x%x' % (sU[5], sU[5], TB_OFF))
    a('v_lshlrev_b32 v10, 2, v0')
    a('s_mov_b64 exec, 0x3ff')
    a('buffer_store_dword v12, v10, %s, %s offen sc1' % (SRD_W, sU[5]))
    a('s_mov_b64 exec, 1')
    a('buffer_store_dword v12, off, %s, %s sc1' % (SRD_W, sTKO))
    a('buffer_store_dword v12, off, %s, %s sc1' % (SRD_W, sTKP))
    a('s_mov_b64 exec, -1')
    a('s_waitcnt vmcnt(28)')
    a('v_lshlrev_b32 v20, 16, v20')
    a('v_readfirstlane_b32 %s, v20' % sB2V)
    for rr in range(2):
        for i in range(4):
            a('v_lshlrev_b32 v%d, 16, v%d' % (20 + 2 * i, 48 + 4 * rr + i))
            a('v_and_b32 v%d, 0xffff0000, v%d' % (21 + 2 * i, 48 + 4 * rr + i))
        a('v_readlane_b32 %s, v20, 0' % sU[3])
        a('v_cmp_gt_u32 vcc, 56, v0')
        for c in range(8): a('v_subrev_f32 v%d, %s, v%d' % (28 + c, sU[3], 20 + c))
        a('v_pk_mul_f32 v[38:39], v[28:29], v[28:29]')
        a('v_pk_add_f32 v[36:37], v[28:29], v[30:31]')
        for c in (2, 4, 6): a('v_pk_fma_f32 v[38:39], %s, %s, v[38:39]' % (vr(28 + c, 2), vr(28 + c, 2)))
        a('v_pk_add_f32 v[32:33], v[32:33], v[34:35]')
        a('v_pk_add_f32 v[36:37], v[36:37], v[32:33]')
        a('v_add_f32 v36, v36, v37')
        a('v_add_f32 v37, v38, v39')
        a('v_cndmask_b32 v36, 0, v36, vcc')
        a('v_cndmask_b32 v37, 0, v37, vcc')
        wave_sum(['v36', 'v37'])
        a('v_readlane_b32 %s, v36, 63' % sU[1])
        a('v_readlane_b32 %s, v37, 63' % sU[2])
        a('v_mov_b32 v38, %s' % f32(1.0 / 448))
        a('v_mul_f32 v36, %s, v38' % sU[1])
        a('v_mul_f32 v37, %s, v38' % sU[2])
        a('v_fma_f32 v37, -v36, v36, v37')
        a('v_add_f32 v36, %s, v36' % sU[3])
        a('v_max_f32 v37, 0, v37')
        ln_finish('v36', 'v37', 'v38', 'v39')
        ln_vec(20, 20, 8, 38, final_round=False)
        for i in range(4): a('v_cvt_pk_bf16_f32 v%d, v%d, v%d' % (28 + i, 20 + 2 * i, 21 + 2 * i))
        a('s_mul_i32 %s, %s, 2080' % (sU[0], sW))
        a('v_lshl_add_u32 v10, v0, 4, %s' % sU[0])
        a('ds_write_b128 v10, v[28:31] offset:%d' % (1040 * rr))
    a('s_waitcnt vmcnt(21)')
    wq_frags(3, 192)
    a('v_and_b32 v10, 7, v0')
    a('v_mul_u32_u24 v10, 1040, v10')
    a('v_and_b32 v11, 48, v0')
    a('s_mul_i32 %s, %s, 224' % (sU[0], sW))
    a('v_add3_u32 v10, v10, v11, %s' % sU[0])
    barrier()
    for k in range(4): a('ds_read2_b64 %s, v10 offset0:%d offset1:%d' % (vr(20 + 4 * k, 4), 7 * k, 7 * k + 1))
    wq_mask(192, range(4))
    for k in range(4):
        for ct in range(2):
            acc = vr(36 + 4 * ct, 4)
            a('v_mfma_f32_16x16x32_bf16 %s, %s, %s, %s' % (acc, vr(20 + 4 * k, 4), vr(192 + 16 * ct + 4 * k, 4), '0' if k == 0 else acc))
    a('s_lshl_b32 %s, %s, 10' % (sU[0], sW))
    a('v_lshl_add_u32 v10, v0, 4, %s' % sU[0])
    a('s_mov_b32 exec_hi, 0')
    a('ds_write_b128 v10, v[36:39] offset:%d' % L_COMB)
    a('ds_write_b128 v10, v[40:43] offset:%d' % (L_COMB + 512))
    a('s_mov_b64 exec, -1')
    a('v_bfe_u32 v10, v0, 4, 1')
    a('v_and_b32 v11, 15, v0')
    a('v_lshlrev_b32 v11, 4, v11')
    a('v_lshl_add_u32 v10, v10, 9, v11')
    a('v_lshrrev_b32 v11, 5, v0')
    a('v_lshl_add_u32 v10, v11, 2, v10')
    a('s_lshr_b32 %s, %s, 1' % (sU[0], sW))
    a('s_lshl_b32 %s, %s, 8' % (sU[0], sU[0]))
    a('s_and_b32 %s, %s, 1' % (sU[1], sW))
    a('s_lshl3_add_u32 %s, %s, %s' % (sU[0], sU[1], sU[0]))
    a('s_add_u32 %s, %s, %d' % (sU[0], sU[0], L_COMB))
    a('v_add_u32 v10, %s, v10' % sU[0])
    barrier()
    a('ds_read2st64_b32 v[20:21], v10 offset0:0 offset1:4')
    a('ds_read2st64_b32 v[22:23], v10 offset0:8 offset1:12')
    a('s_lshl_b32 %s, %s, 15' % (sU[0], sW))
    a('s_add_u32 %s, %s, %s' % (sU[0], sU[0], sSLOT))
    a('s_add_u32 %s, %s, 0x%x' % (sU[0], sU[0], QB_OFF))
    a('v_and_b32 v10, 31, v0')
    a('v_lshlrev_b32 v10, 2, v10')
    a('v_lshl_add_u32 v10, v11, 14, v10')
    a('s_waitcnt lgkmcnt(0)')
    a('v_pk_add_f32 v[20:21], v[20:21], v[22:23]')
    a('v_add_f32 v20, v20, v21')
    a('v_cvt_pk_bf16_f32 v20, v20, v20')
    a('v_lshl_or_b32 v20, v20, 16, 1')
    a('buffer_store_dword v20, v10, %s, %s offen sc1' % (SRD_W, sU[0]))
    a('s_waitcnt vmcnt(0)')
    a('s_barrier')
    arrive()
    stamp(2)
    mixw_unpack()
    a('s_waitcnt vmcnt(0)')
    raise_go()
    def tb_init():
        gelu_consts(12)
        a('s_mul_i32 %s, %s, 10' % (sU[9], sU[10]))
        a('s_add_u32 %s, %s, %d' % (sU[9], sU[9], cfg.ELO * 256))
        a('s_mov_b32 %s, 0' % sU[8])
        a('v_mov_b32 v47, 0')
    def tb_publish():
        a('v_lshlrev_b32 v10, 2, v0')
        a('s_mov_b64 exec, 0x3ff')
        a('buffer_store_dword v47, v10, %s, %s offen sc1' % (SRD_W, sU[5]))
        a('s_mov_b64 exec, -1')
        stamp(26)
    a('s_branch L_bfirst')

    def vec_fetch(soff, tag, lds, regs0=12):
        a('v_lshlrev_b32 v10, 4, v0')
        def issue():
            a('buffer_load_dwordx4 %s, v10, %s, %s offen sc1' % (vr(regs0, 4), SRD_W, soff))
            a('buffer_load_dwordx4 %s, v10, %s, %s offen offset:1024 sc1' % (vr(regs0 + 4, 4), SRD_W, soff))
        poll(issue, vl(regs0, regs0 + 8), tag, 'v11')
        a('s_mov_b32 %s, 0x07060302' % sU[1])
        for i in range(4): a('v_perm_b32 v%d, v%d, v%d, %s' % (regs0 + 8 + i, regs0 + 1 + 2 * i, regs0 + 2 * i, sU[1]))
        a('v_lshlrev_b32 v10, 3, v0')
        a('v_add_u32 v10, %s, v10' % lds)
        a('ds_write_b64 v10, %s' % vr(regs0 + 8, 2))
        a('ds_write_b64 v10, %s offset:512' % vr(regs0 + 10, 2))
    def q_fetch(layer, b):
        slot_off(sU[0], QB_OFF + layer * 0x20000, b)
        a('s_lshl_b32 %s, %s, 11' % (sU[1], sH))
        a('s_add_u32 %s, %s, %s' % (sU[0], sU[0], sU[1]))
        vec_fetch(sU[0], '1', L_QS + 1024 * layer)

    a.label('L_main')
    pv = PV()
    def qk_tile(t):
        for s in range(8):
            acc = vr(S0 + 4 * t, 4)
            a('v_mfma_f32_16x16x32_bf16 %s, %s, %s, %s' % (acc, hreg(t, 4 * s, 4), vr(QF + 4 * s, 4), '0' if s == 0 else acc))
    def q1_issue():
        slot_off(sU[0], QB_OFF)
        a('s_lshl_b32 %s, %s, 11' % (sU[1], sH))
        a('s_add_u32 %s, %s, %s' % (sU[0], sU[0], sU[1]))
        a('v_lshlrev_b32 v10, 4, v0')
        a('buffer_load_dwordx4 v[44:47], v10, %s, %s offen sc1' % (SRD_W, sU[0]))
        a('buffer_load_dwordx4 v[48:51], v10, %s, %s offen offset:1024 sc1' % (SRD_W, sU[0]))
    def q1_stage():
        a('s_mov_b32 %s, 0x07060302' % sU[1])
        for i in range(4): a('v_perm_b32 v%d, v%d, v%d, %s' % (52 + i, 45 + 2 * i, 44 + 2 * i, sU[1]))
        a('s_lshl_b32 %s, %s, 10' % (sU[0], sW))
        a('v_lshl_add_u32 v10, v0, 3, %s' % sU[0])
        a('ds_write_b64 v10, v[52:53] offset:%d' % L_Q1)
        a('ds_write_b64 v10, v[54:55] offset:%d' % (L_Q1 + 512))
        q_addr(0, 'v9')
        a('v_add_u32 v9, %s, v9' % sU[0])
        for s in range(8): a('ds_read_b128 %s, v9 offset:%d' % (vr(QF + 4 * s, 4), L_Q1 + 64 * s))
    def landed(t):
        if t in (3, 7, 11): stamp(29 + (t >> 2))
        if t in (5, 9, 13): stamp(22 + (t >> 2))
        if t < 14:
            move(t)
            a('s_waitcnt lgkmcnt(0)')
    def w_qk0():
        inj, a.inject = a.inject, None
        q1_stage()
        a.inject = inj
        a('s_waitcnt lgkmcnt(0)')
        for u in range(4): qk_tile(u)
    def w_qk1():
        for u in range(4, 8): qk_tile(u)
    def w_pv(t):
        if t == 15: stamp(3)
        if t < 14: pv.reg_tile(t - 8)
        else: pv.lds_tile(t - 8)
    stamp(19)
    pieces(40)
    a('s_waitcnt lgkmcnt(0)')
    st = {'iss': 32, 'lim': 48}
    def nextp():
        if st['iss'] < st['lim']:
            issue_piece(st['iss'] >> 3, st['iss'] & 7); st['iss'] += 1
    def gen_stream(t0, iss0, mark):
        nonlocal pv
        pv = PV()
        st['iss'] = iss0
        work = [(7, w_qk0, 2), (7, w_qk1, 2), (7, softmax, 2)] + [(t, (lambda t=t: w_pv(t)), 1) for t in range(8, 16)]
        extra = 0
        for t in range(t0, 16):
            if t == cfg.TJ:
                while st['iss'] < 8 * (t + 3): nextp()
                assert st['iss'] == 8 * (t + 3) and 'q' not in mark
                a.label('L_mid')
            cap = 128
            st['lim'] = slot_lim(t - 1)
            while st['iss'] < min(8 * (t + 1) + cfg.AH, st['lim']): nextp()
            if t == 15:
                assert st['iss'] == 128
                stamp(8)
                wo_dma(0)
                stamp(10)
                extra = 8
            a('s_waitcnt vmcnt(%d)' % (st['iss'] - 8 * (t + 1) + extra))
            if t == 14 and cfg.late:
                a('v_lshlrev_b32 v9, 3, v0')
                a('s_lshl_b32 %s, %s, 7' % (sU[0], sGH))
                a('s_add_u32 %s, %s, 0x%x' % (sU[0], sU[0], LM_OFF))
                a('buffer_load_dword v62, v9, %s, %s offen sc1' % (SRD_W, sU[0]))
            if t == 15:
                stamp(12)
                Ln = NL('L_n')
                a('s_add_u32 %s, %s, 0x4000000' % (sTB, sTB))
                a('s_mov_b32 %s, 0' % sJ)
                a('s_cmp_gt_u32 %s, 5' % sB)
                a('s_cbranch_scc1 %s' % Ln)
                if cfg.late:
                    a('s_lshr_b32 %s, %s, 1' % (sU[0], sB))
                    a('s_add_u32 %s, %s, 1' % (sU[0], sU[0]))
                    a('v_and_b32 v62, 15, v62')
                    a('v_cmp_eq_u32 vcc, %s, v62' % sU[0])
                    a('s_and_b32 %s, vcc_lo, 0xffff' % sU[0])
                    a('s_bcnt1_i32_b32 %s, %s' % (sU[0], sU[0]))
                    a('s_cmp_ge_u32 %s, %d' % (sU[0], cfg.late))
                    a('s_cbranch_scc1 %s' % Ln)
                pieces(cfg.pre1)
                a.label(Ln)
            if t == 13: assert len(work) <= 8
            if t == cfg.ITK:
                assert 'q' in mark
                a('s_add_u32 %s, %s, 1' % (sU[0], sB))
                a('v_mov_b32 v9, %s' % sU[0])
                a('s_mov_b64 exec, 1')
                a('buffer_store_dword v9, off, %s, %s sc1' % (SRD_W, sTKO))
                a('s_mov_b64 exec, -1')
            if t == cfg.IGO:
                a('s_lshl_b32 %s, %s, 2' % (sU[1], sH))
                a('v_mov_b32 v10, %s' % sU[1])
                a('global_load_dword v60, v10, %s offset:128 sc1' % S_DBG)
                mark['go'] = st['iss']
            elif 'go' in mark and 'q' not in mark:
                Ln = NL('L_n')
                a('s_cmp_lg_u32 %s, 0' % sB)
                a('s_cbranch_scc1 %s' % Ln)
                a('s_waitcnt vmcnt(%d)' % (st['iss'] - mark['go']))
                a('s_call_b64 %s, L_gochk' % RET_A)
                a.label(Ln)
                q1_issue()
                mark['q'] = st['iss']
                mark['qt'] = t
            a.inject, a.acc = (nextp, cfg.IP), 0
            landed(t)
            st['lim'] = slot_lim(t)
            budget = 4
            if 'q' in mark and t == mark['qt'] + 1: a('s_waitcnt vmcnt(%d)' % (st['iss'] - mark['q']))
            while 'q' in mark and t > mark['qt'] and work and work[0][0] <= t and work[0][2] <= budget:
                _, fn, cost = work.pop(0)
                fn(); budget -= cost
            a.inject = None
        assert not work
    gen_stream(2, 40, {})

    def combine(layer):
        if layer == 0: a('s_barrier')
        a('s_lshl_b32 %s, %s, 11' % (sU[0], sW))
        a('v_lshl_add_u32 v28, v0, 2, %s' % sU[0])
        a('v_add_u32 v28, %d, v28' % L_COMB)
        for cg in range(4):
            a('ds_write2st64_b32 v28, v%d, v%d offset0:%d offset1:%d' % (ACC + 4 * cg, ACC + 1 + 4 * cg, cg, 4 + cg))
        a('s_lshl_b32 %s, %s, 4' % (sU[1], sW))
        a('v_lshl_add_u32 v29, v0, 3, %s' % sU[1])
        a('s_mov_b64 exec, 3')
        a('ds_write_b64 v29, v[10:11] offset:%d' % L_ML)
        a('s_mov_b64 exec, -1')
        a('s_lshl_b32 %s, %s, 9' % (sU[0], sW))
        a('v_lshl_add_u32 v28, v0, 3, %s' % sU[0])
        a('s_lshr_b32 %s, %s, 1' % (sU[1], sW))
        a('s_lshl_b32 %s, %s, 3' % (sU[1], sU[1]))
        a('v_mov_b32 v29, %s' % sU[1])
        a('s_lshr_b32 %s, %s, 1' % (sTAG, sB))
        a('s_add_u32 %s, %s, 1' % (sTAG, sTAG))
        a('s_lshl_b32 %s, %s, 11' % (sU[0], sWG))
        a('s_add_u32 %s, %s, 0x%x' % (sU[0], sU[0], OB_OFF + layer * OB_SET))
        a('s_lshl_b32 %s, %s, 7' % (sU[2], sGH))
        a('s_lshl3_add_u32 %s, %s, %s' % (sU[2], sSP, sU[2]))
        a('s_lshr_b32 %s, %s, 1' % (sU[1], sU[1]))
        a('s_add_u32 %s, %s, %s' % (sU[2], sU[2], sU[1]))
        a('s_add_u32 %s, %s, 0x%x' % (sU[2], sU[2], LM_OFF + layer * 2048))
        barrier()
        for w in range(4): a('ds_read_b64 %s, v29 offset:%d' % (vr(12 + 2 * w, 2), L_ML + 16 * w))
        for w in range(4): a('ds_read_b64 %s, v28 offset:%d' % (vr(20 + 2 * w, 2), L_COMB + 2048 * w))
        a('s_waitcnt lgkmcnt(4)')
        a('v_max3_f32 v10, v12, v14, v16')
        a('v_max_f32 v10, v10, v18')
        for w in range(4): a('v_sub_f32 v%d, v%d, v10' % (12 + 2 * w, 12 + 2 * w))
        for w in range(4): a('v_exp_f32 v%d, v%d' % (12 + 2 * w, 12 + 2 * w))
        a('v_mul_f32 v11, v12, v13')
        for w in range(1, 4): a('v_fmac_f32 v11, v%d, v%d' % (12 + 2 * w, 13 + 2 * w))
        a('s_waitcnt lgkmcnt(0)')
        a('v_pk_mul_f32 v[20:21], v[20:21], v[12:13] op_sel_hi:[1,0]')
        a('v_rcp_f32 v32, v11')
        a('v_log_f32 v11, v11')
        for w in range(1, 4): a('v_pk_fma_f32 v[20:21], %s, %s, v[20:21] op_sel_hi:[1,0,1]' % (vr(20 + 2 * w, 2), vr(12 + 2 * w, 2)))
        a('v_add_f32 v10, v10, v11')
        a('v_pk_mul_f32 v[20:21], v[20:21], v[32:33] op_sel_hi:[1,0]')
        a('v_bfi_b32 v10, -16, v10, %s' % sTAG)
        a('v_bfi_b32 v20, -16, v20, %s' % sTAG)
        a('v_bfi_b32 v21, -16, v21, %s' % sTAG)
        lstore('buffer_store_dwordx2 v[20:21], v28, %s, %s offen' % (SRD_W, sU[0]),
               's_mov_b64 exec, 1',
               'buffer_store_dword v10, off, %s, %s' % (SRD_W, sU[2]))
        a('s_mov_b64 exec, -1')
    if cfg.nochain:
        if cfg.ncw & 1: combine(0)
        for _ in range(cfg.nochain): a('s_sleep 36')
        a('s_add_u32 %s, %s, 0x4000000' % (sTB, sTB))
        a('s_mov_b32 %s, %d' % (sJ, cfg.npre))
        tk_load('v8')
        a('s_branch L_nc')
    combine(0)
    stamp(5)

    def lane_rec(stride):
        a('v_lshrrev_b32 v11, 3, v0')
        a('v_mul_u32_u24 v11, %d, v11' % stride)
        a('v_and_b32 v10, 7, v0')
        a('v_lshl_add_u32 v10, v10, 4, v11')
    def role_layer(Lskip, tail):
        a('s_sub_u32 %s, %s, 1' % (sPASS, sW))
        a('s_cmp_gt_u32 %s, 1' % sPASS)
        a('s_cbranch_scc1 %s' % Lskip)
        if tail: only_wave(2, Lskip)
        a('s_lshr_b32 %s, %s, 1' % (sU[4], sB))
        a('s_add_u32 %s, %s, 1' % (sU[4], sU[4]))
        a('s_sub_u32 %s, %s, %s' % (sU[4], sU[4], sPASS))
        a('s_cmp_eq_u32 %s, 0' % sU[4])
        a('s_cbranch_scc1 %s' % Lskip)
    def o_and_r(tail):
        Lo, Lj = NL('L_o'), NL('L_j')
        role_layer(Lo, tail)
        lane_rec(16384)
        a('v_and_b32 v11, 56, v0')
        a('s_lshl_b32 %s, %s, 19' % (sU[0], sPASS))
        a('s_add_u32 %s, %s, %s' % (sU[0], sU[0], sYREC))
        a('s_add_u32 %s, %s, 0x20000' % (sU[1], sU[0]))
        a('s_lshl4_add_u32 %s, %s, %s' % (sU[5], sPASS, sGH))
        a('s_lshl_b32 %s, %s, 7' % (sU[2], sU[5]))
        a('s_lshr_b32 %s, %s, 3' % (sU[3], sSP))
        a('s_lshl2_add_u32 %s, %s, %s' % (sU[2], sU[3], sU[2]))
        a('s_add_u32 %s, %s, 0x%x' % (sU[2], sU[2], LM_OFF))
        def issue():
            a('buffer_load_dwordx4 v[12:15], v10, %s, %s offen sc1' % (SRD_W, sU[0]))
            a('buffer_load_dwordx4 v[16:19], v10, %s, %s offen sc1' % (SRD_W, sU[1]))
            a('buffer_load_dword v20, v11, %s, %s offen sc1' % (SRD_W, sU[2]))
            a('buffer_load_dword v21, v11, %s, %s offen offset:64 sc1' % (SRD_W, sU[2]))
        poll(issue, vl(12, 22), sU[4], 'v22')
        stamp(7)
        a('v_max_f32 v22, v20, v21')
        a('v_max_f32_dpp v22, v22, v22 ' + ROR8)
        xrow('v_max_f32', ['v22'], ['v23'])
        a('v_sub_f32 v20, v20, v22')
        a('v_sub_f32 v21, v21, v22')
        a('v_exp_f32 v20, v20')
        a('v_exp_f32 v21, v21')
        for c in (0, 2): a('v_pk_mul_f32 %s, %s, v[20:21] op_sel_hi:[1,0]' % (vr(12 + c, 2), vr(12 + c, 2)))
        for c in (0, 2): a('v_pk_fma_f32 %s, %s, v[20:21], %s op_sel:[0,1,0] op_sel_hi:[1,1,1]' % (vr(12 + c, 2), vr(16 + c, 2), vr(12 + c, 2)))
        a('v_add_f32 v16, v20, v21')
        R5 = vl(12, 17)
        for r in R5: a('v_add_f32_dpp %s, %s, %s %s' % (r, r, r, ROR8))
        xrow('v_add_f32', R5, vl(17, 22))
        a('v_rcp_f32 v16, v16')
        a('s_lshl_b32 %s, %s, 11' % (sU[0], sU[5]))
        a('s_add_u32 %s, %s, 0x%x' % (sU[0], sU[0], ON_OFF))
        a('s_lshl_b32 %s, %s, 7' % (sU[2], sSP))
        a('s_add_u32 %s, %s, %s' % (sU[2], sU[2], sU[0]))
        for c in (0, 2): a('v_pk_mul_f32 %s, %s, v[16:17] op_sel_hi:[1,0]' % (vr(12 + c, 2), vr(12 + c, 2)))
        a('v_cvt_pk_bf16_f32 v13, v12, v13')
        a('v_cvt_pk_bf16_f32 v15, v14, v15')
        a('v_mov_b32 v16, 0xffff0000')
        a('v_lshl_or_b32 v12, v13, 16, %s' % sU[4])
        a('v_lshl_or_b32 v14, v15, 16, %s' % sU[4])
        a('v_and_or_b32 v13, v13, v16, %s' % sU[4])
        a('v_and_or_b32 v15, v15, v16, %s' % sU[4])
        a('s_mov_b64 exec, 0xff')
        lstore('buffer_store_dwordx4 v[12:15], v10, %s, %s offen' % (SRD_W, sU[2]))
        a('s_mov_b64 exec, -1')
        stamp(9)
        wo_frags(tail)
        a('s_lshl_b32 %s, %s, 10' % (sU[2], sPASS))
        a('s_add_u32 %s, %s, %d' % (sU[2], sU[2], L_OS))
        vec_fetch(sU[0], sU[4], sU[2], 16)
        stamp(11)
        a('s_branch %s' % Lj)
        a.label(Lo)
        a('s_waitcnt vmcnt(0)')
        wo_frags(tail)
        a.label(Lj)
        a('v_and_b32 v10, 1, v0')
        a('v_and_b32 v11, 48, v0')
        a('v_lshl_add_u32 v10, v10, 10, v11')
        a('s_lshl_b32 %s, %s, 8' % (sU[0], sW))
        a('v_add_u32 v10, %s, v10' % sU[0])
        a('v_lshl_add_u32 v11, v0, 2, %s' % sU[0])
        a('v_add_u32 v11, %d, v11' % L_YP)
        barrier()
        for k in range(4): a('ds_read_b128 %s, v10 offset:%d' % (vr(12 + 4 * k, 4), L_OS + 64 * k))
        for k in range(4):
            a('s_waitcnt lgkmcnt(%d)' % (3 - k))
            for ct in range(2):
                acc = vr(28, 4) if ct else vr(6, 4)
                a('v_mfma_f32_16x16x32_bf16 %s, %s, %s, %s' % (acc, vr(12 + 4 * k, 4), vr(WR + 16 * ct + 4 * k, 4), '0' if k == 0 else acc))
        a('s_mov_b64 exec, 0xffff')
        a('ds_write2_b32 v11, v6, v28 offset0:0 offset1:16')
        a('ds_write2_b32 v11, v7, v29 offset0:32 offset1:48')
        a('s_mov_b64 exec, -1')
        barrier()
        Lo = NL('L_o')
        role_layer(Lo, tail)
        a('v_lshlrev_b32 v10, 2, v0')
        a('s_lshl_b32 %s, %s, 7' % (sU[0], sPASS))
        a('s_add_u32 %s, %s, %d' % (sU[0], sU[0], L_YP))
        a('v_add_u32 v11, %s, v10' % sU[0])
        a('ds_read2st64_b32 v[12:13], v11 offset0:0 offset1:1')
        a('ds_read2st64_b32 v[14:15], v11 offset0:2 offset1:3')
        a('s_mul_i32 %s, %s, 6' % (sU[0], sPASS))
        a('s_add_u32 %s, %s, %s' % (sU[0], sU[0], sB))
        slot_off(sU[0], XP_OFF, sU[0])
        a('s_add_u32 %s, %s, %s' % (sU[0], sU[0], sSLOT))
        a('s_waitcnt lgkmcnt(0)')
        a('v_pk_add_f32 v[12:13], v[12:13], v[14:15]')
        a('v_add_f32 v12, v12, v13')
        a('v_bfi_b32 v12, -16, v12, 1')
        a('s_mov_b32 exec_hi, 0')
        a('buffer_store_dword v12, v10, %s, %s offen sc1' % (SRD_W, sU[0]))
        a('s_mov_b64 exec, -1')
        stamp(13)
        a.label(Lo)
        if not tail:
            a('s_waitcnt vmcnt(0)')
            wq_frags(0, WR)
            wq_mask(WR, [3])
    o_and_r(False)

    def table_fetch():
        Ln, Lr = NL('L_n'), NL('L_tg')
        a('s_cmp_gt_u32 %s, 1' % sB)
        a('s_cbranch_scc1 %s' % Ln)
        a('v_and_b32 v10, 7, v0')
        a('v_lshlrev_b32 v10, 2, v10')
        a.label(Lr)
        a('global_load_dword v11, v10, %s offset:128 sc1' % S_DBG)
        tmo_check()
        a('s_waitcnt vmcnt(0)')
        a('v_cmp_eq_u32 vcc, 0, v11')
        a('s_cbranch_vccnz %s' % Lr)
        a('s_mul_i32 %s, %s, 5120' % (sU[0], sW))
        a('s_add_u32 %s, %s, 0x%x' % (sU[0], sU[0], TB_OFF))
        a('s_add_u32 %s, %s, 4096' % (sU[1], sU[0]))
        a('v_lshlrev_b32 v10, 4, v0')
        def issue():
            for i in range(5):
                a('buffer_load_dwordx4 %s, v10, %s, %s offen offset:%d sc1' % (vr(12 + 4 * i, 4), SRD_W, sU[i >> 2], 1024 * (i & 3)))
        poll(issue, vl(12, 32), '1', 'v11')
        a('s_mov_b32 %s, 0x07060302' % sU[1])
        for i in range(10): a('v_perm_b32 v%d, v%d, v%d, %s' % (12 + i, 13 + 2 * i, 12 + 2 * i, sU[1]))
        a('s_mul_i32 %s, %s, 2560' % (sU[0], sW))
        a('v_lshl_add_u32 v10, v0, 3, %s' % sU[0])
        for i in range(5): a('ds_write_b64 v10, %s offset:%d' % (vr(12 + 2 * i, 2), L_TBL + 512 * i))
        a.label(Ln)
    table_fetch()

    def col_quad(dst, tmp):
        a('v_bfe_u32 %s, v0, 3, 2' % dst)
        a('v_and_b32 %s, 7, v0' % tmp)
        a('v_min_u32 %s, 6, %s' % (tmp, tmp))
        a('v_lshlrev_b32 %s, 2, %s' % (tmp, tmp))
        a('v_mad_u32_u24 %s, %s, 28, %s' % (dst, dst, tmp))
    def row_stats():
        a('s_xor_b32 %s, %s, 64' % (sXN, sXN))
        a('v_readlane_b32 %s, v10, 0' % sU[3])
        a('s_mov_b32 vcc_lo, 0x7f7f7f7f')
        a('s_mov_b32 vcc_hi, 0x7f7f7f7f')
        a('s_lshl4_add_u32 %s, %s, %s' % (sU[2], sW, sXN))
        for c in range(4): a('v_subrev_f32 v%d, %s, v%d' % (14 + c, sU[3], 10 + c))
        a('v_mov_b32 v22, %s' % sU[2])
        a('v_pk_mul_f32 v[20:21], v[14:15], v[14:15]')
        a('v_pk_add_f32 v[18:19], v[14:15], v[16:17]')
        a('v_pk_fma_f32 v[20:21], v[16:17], v[16:17], v[20:21]')
        a('v_add_f32 v18, v18, v19')
        a('v_and_b32 v23, 3, v0')
        a('v_add_f32 v19, v20, v21')
        a('v_mov_b32 v20, %s' % sU[3])
        a('v_cndmask_b32 v18, 0, v18, vcc')
        a('v_cndmask_b32 v19, 0, v19, vcc')
        a('v_lshl_add_u32 v23, v23, 4, %s' % sXN)
        wave_sum(['v18', 'v19'], 5)
        a('s_mov_b32 exec_lo, 0x80000000')
        a('s_mov_b32 exec_hi, 0')
        a('ds_write_b128 v22, v[18:21] offset:%d' % L_MX)
        a('s_mov_b64 exec, -1')
        a('v_mov_b32 v24, %s' % f32(112.0))
        barrier()
        a('ds_read_b128 v[14:17], v23 offset:%d' % L_MX)
        a('s_waitcnt lgkmcnt(0)')
        a('v_fma_f32 v26, v16, v24, v14')
        a('v_mul_f32 v14, -2.0, v14')
        wave_sum(['v26'], 2)
        a('v_mul_f32 v26, %s, v26' % f32(1.0 / 448))
        a('v_sub_f32 v16, v26, v16')
        a('v_fmac_f32 v14, v16, v24')
        a('v_fmac_f32 v15, v16, v14')
        wave_sum(['v15'], 2)
        a('v_mul_f32 v27, %s, v15' % f32(1.0 / 448))
        a('v_max_f32 v27, 0, v27')
    def dbg_quad(kind):
        if cfg.stamps != 1: return
        a('s_lshl_b32 %s, %s, 11' % (sU[1], sB))
        a('s_lshl_b32 %s, %s, 9' % (sU[2], sW))
        a('s_add_u32 %s, %s, %s' % (sU[1], sU[1], sU[2]))
        a('s_add_u32 %s, %s, 0x%x' % (sU[1], sU[1], XDBG_OFF + kind * 0x4000))
        a('v_lshlrev_b32 v3, 4, v0')
        a('s_mov_b32 exec_hi, 0')
        a('buffer_store_dwordx4 v[10:13], v3, %s, %s offen' % (SRD_W, sU[1]))
        a('s_mov_b64 exec, -1')

    def mixer_step(layer, after_gather=None):
        a('s_lshl_b32 %s, %s, 11' % (sU[8], sB))
        a('s_lshl_b32 %s, %s, 9' % (sU[2], sW))
        a('s_add_u32 %s, %s, %s' % (sU[8], sU[8], sU[2]))
        a('s_add_u32 %s, %s, 0x%x' % (sU[8], sU[8], XS_OFF))
        a('v_and_b32 v7, 31, v0')
        a('v_lshlrev_b32 v7, 4, v7')
        if layer == 0:
            col_quad('v8', 'v9')
            a('s_mul_i32 %s, %s, 896' % (sU[1], sB))
            a('s_mul_i32 %s, %s, 224' % (sU[0], sW))
            a('s_add_u32 %s, %s, %s' % (sU[1], sU[1], sU[0]))
            a('v_lshl_add_u32 v8, v8, 1, %s' % sU[1])
            a('global_load_dwordx2 v[28:29], v8, %s' % S_X)
        else:
            a('buffer_load_dwordx4 v[28:31], v7, %s, %s offen sc1' % (SRD_W, sU[8]))
        slot_off(sU[0], XP_OFF + layer * 0x20000)
        a('s_add_u32 %s, %s, %s' % (sU[0], sU[0], sU[2]))
        a('s_add_u32 %s, %s, 4096' % (sU[1], sU[0]))
        a('v_lshrrev_b32 v9, 5, v0')
        a('v_lshl_add_u32 v9, v9, 13, v7')
        barrier()
        if cfg.dX: a('s_sleep %d' % cfg.dX)
        stamp(27 + layer)
        def issue():
            for i in range(4):
                a('buffer_load_dwordx4 %s, v9, %s, %s offen offset:%d sc1' % (vr(10 + 4 * i, 4), SRD_W, sU[i >> 1], 2048 * (i & 1)))
        poll(issue, vl(10, 26), '1', 'v8', backoff=cfg.bx)
        if after_gather: after_gather()
        stamp(15 + layer)
        for c in (0, 2): a('v_pk_add_f32 %s, %s, %s' % (vr(10 + c, 2), vr(10 + c, 2), vr(14 + c, 2)))
        for c in (0, 2): a('v_pk_add_f32 %s, %s, %s' % (vr(18 + c, 2), vr(18 + c, 2), vr(22 + c, 2)))
        for c in (0, 2): a('v_pk_add_f32 %s, %s, %s' % (vr(10 + c, 2), vr(10 + c, 2), vr(18 + c, 2)))
        if layer == 0:
            a('v_and_b32 v31, 0xffff0000, v29\nv_lshlrev_b32 v30, 16, v29\nv_and_b32 v29, 0xffff0000, v28\nv_lshlrev_b32 v28, 16, v28')
        xrow('v_add_f32', vl(10, 14), vl(14, 18), swaps=('v_permlane32_swap_b32',))
        bf16r(vl(10, 14))
        for c in (0, 2): a('v_pk_add_f32 %s, %s, %s' % (vr(10 + c, 2), vr(10 + c, 2), vr(28 + c, 2)))
        bf16r(vl(10, 14))
        dbg_quad(2 * layer)
        row_stats()
        ln_finish('v26', 'v27', 'v28', 'v29')
        a('v_sub_f32 v26, v26, v28')
        a('v_mul_f32 v27, v27, v29')
        a('v_mul_f32 v26, v26, v29')
        a('v_mul_f32 v27, v27, v29')
        ln_vec(10, 18, 4, 28)
        ln_finish('v26', 'v27', 'v28', 'v29')
        ln_vec(18, 18, 4, 28)
        Y = [22, 23, 24, 25]
        for c in range(4): a('v_lshrrev_b32 v%d, 31, v%d' % (Y[c], 18 + c))
        for c in range(4): a('v_bfe_u32 v%d, v%d, 14, 17' % (18 + c, 18 + c))
        for c in range(4): a('v_lshl_add_u32 v%d, v%d, 1, v%d' % (18 + c, Y[c], 18 + c))
        for c in range(4): a('v_subrev_u32 v%d, %d, v%d' % (18 + c, cfg.ELO * 512, 18 + c))
        for c in range(4): a('v_min_u32 v%d, 10238, v%d' % (Y[c], 18 + c))
        for c in range(4): a('ds_read_u16 v%d, v%d offset:%d' % (Y[c], Y[c], L_TBL))
        a('v_max3_u32 v8, v18, v19, v20')
        a('v_max_u32 v8, v8, v21')
        a('v_cmp_lt_u32 vcc, 10239, v8')
        Lok = NL('L_ok')
        a('s_waitcnt lgkmcnt(0)')
        a('s_and_b32 s78, vcc_lo, 0x7f7f7f7f')
        for c in range(4): a('v_lshlrev_b32 v%d, 16, v%d' % (Y[c], Y[c]))
        a('s_cbranch_scc0 %s' % Lok)
        if layer == 0:
            a('s_lshl2_add_u32 %s, %s, %s' % (sU[9], sWG, sW))
            a('s_lshl_b32 %s, %s, 13' % (sU[9], sU[9]))
            a('s_add_u32 %s, %s, 0x800000' % (sU[9], sU[9]))
            a('s_add_u32 %s, %s, 4096' % (sU[10], sU[9]))
            a('v_lshlrev_b32 v31, 4, v0')
            for i in range(8): a('buffer_store_dwordx4 %s, v31, %s, %s offen offset:%d sc1' % (vr(WR + 4 * i, 4), SRD_W, sU[9 + (i >> 2)], 1024 * (i & 3)))
            a('s_waitcnt vmcnt(0)')
        for c in range(4):
            L1, L2 = NL('L_fb'), NL('L_fe')
            a('v_cmp_lt_u32 vcc, 10239, v%d' % (18 + c))
            a('s_and_b32 s78, vcc_lo, 0x7f7f7f7f')
            a.label(L1)
            a('s_cmp_eq_u32 s78, 0')
            a('s_cbranch_scc1 %s' % L2)
            a('s_ff1_i32_b32 s80, s78')
            a('s_bitset0_b32 s78, s80')
            a('v_readlane_b32 s76, v%d, s80' % (18 + c))
            a('s_call_b64 %s, L_eval' % RET_F)
            a('s_mov_b32 m0, s80')
            a('s_nop 0')
            a('v_writelane_b32 v%d, s76, m0' % Y[c])
            a('s_branch %s' % L1)
            a.label(L2)
        if layer == 0:
            for i in range(8): a('ds_read_b128 %s, v31 offset:%d' % (vr(WR + 4 * i, 4), 1024 * i) if False else 'buffer_load_dwordx4 %s, v31, %s, %s offen offset:%d sc1' % (vr(WR + 4 * i, 4), SRD_W, sU[9 + (i >> 2)], 1024 * (i & 3)))
            a('s_waitcnt vmcnt(0)')
        a.label(Lok)
        stamp(21 + layer)
        for c in (0, 2): a('v_pk_add_f32 %s, %s, %s' % (vr(10 + c, 2), vr(10 + c, 2), vr(22 + c, 2)))

    def prefetch01():
        Ln = NL('L_n')
        a('s_cmp_gt_u32 %s, 5' % sB)
        a('s_cbranch_scc1 %s' % Ln)
        a('s_add_u32 %s, %s, 8' % (sU[0], sJ))
        a('s_min_u32 %s, %s, %d' % (sU[0], sU[0], cfg.npre))
        pieces(sU[0])
        a.label(Ln)
    mixer_step(0, prefetch01)
    bf16r(vl(10, 14))
    dbg_quad(1)
    Ln = NL('L_n')
    a('s_cmp_lg_u32 %s, %s' % (sFIN, sB))
    a('s_cbranch_scc1 %s' % Ln)
    a('s_mov_b32 exec_hi, 0')
    a('buffer_store_dwordx4 v[10:13], v7, %s, %s offen sc1' % (SRD_W, sU[8]))
    a('s_mov_b64 exec, -1')
    a.label(Ln)
    row_stats()
    ln_finish('v26', 'v27', 'v28', 'v29')
    ln_vec(10, 14, 4, 28, final_round=False)
    a('v_cvt_pk_bf16_f32 v18, v14, v15')
    a('v_cvt_pk_bf16_f32 v19, v16, v17')
    a('s_lshl_b32 %s, %s, 8' % (sU[2], sW))
    a('v_lshl_add_u32 v22, v0, 3, %s' % sU[2])
    a('v_cndmask_b32 v18, 0, v18, vcc')
    a('v_cndmask_b32 v19, 0, v19, vcc')
    a('v_and_b32 v23, 48, v0')
    a('v_add_u32 v23, %s, v23' % sU[2])
    a('s_mov_b32 exec_hi, 0')
    a('ds_write_b64 v22, v[18:19] offset:%d' % L_NST)
    a('s_mov_b64 exec, -1')
    for k in range(4): a('ds_read_b128 %s, v23 offset:%d' % (vr(6 + 4 * k, 4), L_NST + 64 * k))
    slot_off(sU[0], QB_OFF + 0x20000)
    a('s_add_u32 %s, %s, %s' % (sU[0], sU[0], sSLOT))
    a('s_lshl_b32 %s, %s, 7' % (sU[2], sW))
    a('v_lshl_add_u32 v22, v0, 2, %s' % sU[2])
    for k in range(4):
        a('s_waitcnt lgkmcnt(%d)' % (3 - k))
        for ct in range(2):
            acc = vr(24 + 4 * ct, 4)
            a('v_mfma_f32_16x16x32_bf16 %s, %s, %s, %s' % (acc, vr(6 + 4 * k, 4), vr(WR + 16 * ct + 4 * k, 4), '0' if k == 0 else acc))
    a('s_mov_b64 exec, 0xffff')
    a('v_add_u32 v22, %d, v22' % L_QP)
    a('ds_write2_b32 v22, v24, v28 offset0:0 offset1:16')
    a('s_mov_b64 exec, -1')
    a('v_lshlrev_b32 v10, 2, v0')
    a('v_and_b32 v11, 124, v10')
    a('v_add_u32 v11, %d, v11' % L_QP)
    barrier()
    tk_load('v8')
    Lo = NL('L_o')
    only_wave(0, Lo)
    a('ds_read2_b32 v[12:13], v11 offset0:0 offset1:32')
    a('ds_read2_b32 v[14:15], v11 offset0:64 offset1:96')
    a('s_waitcnt lgkmcnt(0)')
    a('v_pk_add_f32 v[12:13], v[12:13], v[14:15]')
    a('v_add_f32 v12, v12, v13')
    a('v_cvt_pk_bf16_f32 v11, v12, v12')
    a('v_lshl_or_b32 v11, v11, 16, 1')
    a('s_mov_b32 exec_hi, 0')
    lstore('buffer_store_dword v11, v10, %s, %s offen' % (SRD_W, sU[0]))
    a('s_mov_b64 exec, -1')
    stamp(17)
    q_fetch(1, sB)
    a.label(Lo)
    a.label('L_nc')
    q_addr(1, 'v9')
    a('s_waitcnt vmcnt(0)')
    barrier()
    stamp(4)
    a('v_readfirstlane_b32 %s, v8' % sU[0])
    a('s_add_u32 %s, %s, 2' % (sU[1], sB))
    a('s_cmp_ge_u32 %s, %s' % (sU[0], sU[1]))
    a('s_cselect_b32 %s, 1, %d' % (sFAST, 0 if cfg.ITK else 1))
    a('s_cmp_gt_u32 %s, 5' % sB)
    a('s_cselect_b32 %s, 0, %s' % (sFAST, sFAST))
    def qk(tiles):
        for s in range(4): a('ds_read_b128 %s, v9 offset:%d' % (vr(P0 + 4 * s, 4), L_QS + 1024 + 64 * s))
        for s in range(8):
            a('s_waitcnt lgkmcnt(%d)' % (3 if s < 5 else 7 - s))
            f = P0 + 4 * (s & 3)
            for t in tiles:
                acc = vr(S0 + 4 * t, 4)
                a('v_mfma_f32_16x16x32_bf16 %s, %s, %s, %s' % (acc, hreg(t, 4 * s, 4), vr(f, 4), '0' if s == 0 else acc))
            if s < 4: a('ds_read_b128 %s, v9 offset:%d' % (vr(f, 4), L_QS + 1024 + 64 * (s + 4)))
    def pass1(stream):
        if not stream:
            wo_dma(0)
            qk(range(8))
        else:
            pieces(16)
            st['iss'], st['lim'] = 16, 32
            qk(range(2))
            a('s_waitcnt vmcnt(0)')
            move(0)
            move(1)
            a('s_waitcnt lgkmcnt(0)')
            for _ in range(cfg.b1): nextp()
            a.inject, a.acc = (nextp, cfg.IP1), -100 * cfg.b1
            qk(range(2, 8))
        softmax()
        pv = PV()
        pv.lds_tile(6)
        st['lim'] = 40
        pv.lds_tile(7)
        for t in range(6): pv.reg_tile(t)
        a.inject = None
        if stream:
            for _ in range(cfg.b1 // 2): nextp()
            a('s_mov_b32 %s, %d' % (sJ, st['iss']))
    Lp, Lc = NL('L_p1'), NL('L_p1')
    a('s_cmp_eq_u32 %s, 0' % sFAST)
    a('s_cbranch_scc1 %s' % Lp)
    pass1(True)
    a('s_branch %s' % Lc)
    a.label(Lp)
    pass1(False)
    a.label(Lc)
    if not cfg.nochain or cfg.ncw & 1: combine(1)
    stamp(6)
    a('s_add_u32 %s, %s, 2' % (sB, sB))
    a('s_cmp_lt_u32 %s, 8' % sB)
    a('s_cbranch_scc1 L_main')
    if cfg.nochain: a('s_branch L_exit')

    o_and_r(True)
    a('s_cmp_gt_u32 %s, 7' % sFIN)
    a('s_cbranch_scc1 L_fin')
    a('s_mov_b32 %s, %s' % (sB, sFIN))
    mixer_step(1)
    a('v_cvt_pk_bf16_f32 v14, v10, v11')
    a('v_cvt_pk_bf16_f32 v15, v12, v13')
    col_quad('v8', 'v9')
    a('s_mul_i32 %s, %s, 896' % (sU[1], sB))
    a('s_mul_i32 %s, %s, 224' % (sU[2], sW))
    a('s_add_u32 %s, %s, %s' % (sU[1], sU[1], sU[2]))
    a('v_lshl_add_u32 v8, v8, 1, %s' % sU[1])
    a('s_mov_b32 exec_hi, 0')
    a('s_mov_b32 exec_lo, 0x7f7f7f7f')
    a('global_store_dwordx2 v8, v[14:15], %s' % S_OUT)
    a('s_mov_b64 exec, -1')
    stamp(18)
    a.label('L_fin')
    if cfg.pev >= 0:
        if cfg.ph >= 0: a('s_cmp_lg_u32 %s, %d' % (sH, cfg.ph))
        else: a('s_cmp_lg_u32 %s, %d' % (sFIN, 6 + (cfg.pb & 1)))
        a('s_cbranch_scc1 L_exit')
        a('s_add_u32 s98, s98, 15000')
        a.label('L_spin')
        a('s_memrealtime s[66:67]')
        a('s_waitcnt lgkmcnt(0)')
        a('s_sub_u32 s66, s66, s96')
        a('s_cmp_lt_u32 s66, s98')
        a('s_cbranch_scc1 L_spin')
    a.label('L_exit')
    a('s_endpgm')

    a.label('L_bfirst')
    if cfg.wwarm: wo_dma(2)
    if cfg.touch:
        Ln = NL('L_n')
        only_wave(cfg.touch - 1, Ln)
        a('v_lshrrev_b32 v10, 3, v0')
        a('v_lshlrev_b32 v10, 25, v10')
        a('v_and_b32 v11, 7, v0')
        a('v_lshl_add_u32 v10, v11, 15, v10')
        a('s_and_b32 %s, %s, 0x1ffffff' % (sU[0], sTB))
        a('buffer_load_dword v61, v10, %s, %s offen nt' % (SRD_K, sU[0]))
        a('buffer_load_dword v61, v10, %s, %s offen nt' % (SRD_V, sU[0]))
        a('v_mul_u32_u24 v10, %d, v0' % (8 * 896))
        a('s_mul_i32 %s, %s, %d' % (sU[0], sH, 512 * 896))
        a('buffer_load_dword v61, v10, %s, %s offen' % (SRD_O, sU[0]))
        a.label(Ln)
    tb_init()
    nb = 10 - cfg.TJ
    a('s_mov_b32 %s, 0' % sJ)
    a.label('L_tbl')
    a('s_add_u32 %s, %s, %d' % (sU[0], sJ, cfg.bpre))
    pieces(sU[0])
    a('s_call_b64 %s, L_tb1' % RET_A)
    a('s_call_b64 %s, L_tb2' % RET_A)
    a('s_cmp_lt_u32 %s, %d' % (sU[8], nb))
    a('s_cbranch_scc1 L_tbl')
    assert nb * cfg.bpre <= 16
    a('v_mov_b32 v60, 0')
    a('s_call_b64 %s, L_gochk' % RET_A)
    stamp(19)
    pieces(16)
    for k in range(cfg.TJ):
        a('s_waitcnt vmcnt(8)')
        move(k)
        a('s_waitcnt lgkmcnt(0)')
        assert slot_lim(k) >= 8 * (k + 3)
        issue_group(2 * k + 4)
        a('s_call_b64 %s, L_tb1' % RET_A)
        issue_group(2 * k + 5)
        a('s_call_b64 %s, L_tb2' % RET_A)
    assert slot_lim(cfg.TJ - 1) >= 8 * (cfg.TJ + 3)
    for i in (0, 1): issue_group(2 * cfg.TJ + 4 + i)
    tb_publish()
    a('s_branch L_mid')

    a.label('L_pcs')
    a('s_and_b32 %s, %s, 15' % (sU[11], sJ))
    a('s_cmp_lt_u32 %s, 32' % sJ)
    a('s_cselect_b32 %s, 8, 16' % sU[12])
    a('s_xor_b32 %s, %s, %s' % (sU[11], sU[11], sU[12]))
    a('s_lshl_b32 %s, %s, 10' % (sU[11], sU[11]))
    a('s_add_u32 m0, %s, %s' % (sRING, sU[11]))
    a('s_and_b32 %s, %s, 7' % (sU[11], sJ))
    a('s_lshl_b32 %s, %s, %d' % (sU[11], sU[11], 7 if cfg.ksw else 5))
    a('s_lshl_b32 %s, %s, 12' % (sU[12], sJ))
    a('s_or_b32 %s, %s, %s' % (sU[11], sU[11], sU[12]))
    a('v_xor_b32 v3, %s, %s' % (sU[11], vBK))
    a('s_add_u32 %s, %s, 1' % (sJ, sJ))
    a('buffer_load_dwordx4 v3, %s, %s offen nt lds' % (SRD_K, sTB))
    a.label('L_pieces')
    a('s_cmp_lt_u32 %s, %s' % (sJ, sU[13]))
    a('s_cbranch_scc1 L_pcs')
    a('s_setpc_b64 %s' % RET_P)
    a.label('L_gor')
    a('s_lshl_b32 %s, %s, 2' % (sU[1], sH))
    a('v_mov_b32 v10, %s' % sU[1])
    a('global_load_dword v60, v10, %s offset:128 sc1' % S_DBG)
    tmo_check()
    a('s_waitcnt vmcnt(0)')
    a.label('L_gochk')
    a('v_cmp_eq_u32 vcc, 0, v60')
    a('s_cbranch_vccnz L_gor')
    a('v_readfirstlane_b32 %s, v60' % sLOC)
    a('s_and_b32 %s, %s, %d' % (sLOC, sLOC, 0 if cfg.force_global else 1))
    a('s_setpc_b64 %s' % RET_A)

    for half in range(2):
        a.label('L_tb%d' % (half + 1))
        if half == 0:
            a('s_add_u32 %s, %s, %s' % (sU[2], sU[9], sU[8]))
            a('s_lshl_b32 %s, %s, 31' % (sU[3], sU[2]))
            a('s_lshr_b32 %s, %s, 1' % (sU[2], sU[2]))
            a('s_lshl_b32 %s, %s, 16' % (sU[2], sU[2]))
            a('s_or_b32 %s, %s, %s' % (sU[2], sU[2], sU[3]))
            a('v_mov_b32 v44, %s' % sU[2])
        idx = list(range(7 * half, 7 * half + 7))
        gelu_pairs('v[44:45]', [112 + 2 * i for i in idx], [140 + 2 * i for i in idx], [92 + i for i in idx],
                   [16 + 2 * i for i in range(7)], [30 + 2 * i for i in range(7)], [14, 15], 12, half == 0)
        if half == 1:
            mix_finish([14, 15], sU[2])
            a('s_or_b32 %s, %s, 1' % (sU[2], sU[2]))
            a('s_mov_b32 m0, %s' % sU[8])
            a('s_nop 0')
            a('v_writelane_b32 v47, %s, m0' % sU[2])
            a('s_add_u32 %s, %s, 1' % (sU[8], sU[8]))
        a('s_setpc_b64 %s' % RET_A)

    a.label('L_eval')
    gelu_consts(62)
    a('s_add_u32 s76, s76, %d' % (cfg.ELO * 512))
    a('s_lshl_b32 s77, s76, 30')
    a('s_and_b32 s77, s77, 0x80000000')
    a('s_lshr_b32 s76, s76, 2')
    a('s_lshl_b32 s76, s76, 16')
    a('s_or_b32 s76, s76, s77')
    a('v_mov_b32 v32, s76')
    a('v_mov_b32 v34, 0\nv_mov_b32 v35, 0')
    a('v_lshlrev_b32 v33, 3, v0')
    a('s_mov_b32 s81, 0')
    a.label('L_ev')
    a('global_load_dwordx2 v[36:37], v33, %s' % S_W1)
    a('global_load_dwordx2 v[38:39], v33, %s' % S_B1)
    a('global_load_dwordx2 v[40:41], v33, %s' % S_W2)
    a('s_waitcnt vmcnt(0)')
    for i in range(2):
        a('v_lshlrev_b32 v%d, 16, v%d' % (42 + 2 * i, 36 + i))
        a('v_and_b32 v%d, 0xffff0000, v%d' % (43 + 2 * i, 36 + i))
        a('v_lshlrev_b32 v%d, 16, v%d' % (46 + 2 * i, 38 + i))
        a('v_and_b32 v%d, 0xffff0000, v%d' % (47 + 2 * i, 38 + i))
    gelu_pairs('v[32:33]', [42, 44], [46, 48], [40, 41], [50, 52], [54, 56], [34, 35], 62, False)
    a('v_add_u32 v33, 512, v33')
    a('s_add_u32 s81, s81, 1')
    a('s_cmp_lt_u32 s81, 7')
    a('s_cbranch_scc1 L_ev')
    mix_finish([34, 35], 's76')
    a('s_setpc_b64 %s' % RET_F)

    a.label('L_code_end')
    a.raw('.section .rodata,"a"')
    a.raw('.p2align 6')
    a.raw('.amdhsa_kernel %s_kernel' % NAME)
    a.raw('  .amdhsa_next_free_vgpr 512')
    a.raw('  .amdhsa_next_free_sgpr %d' % NSGPR)
    a.raw('  .amdhsa_accum_offset 256')
    a.raw('  .amdhsa_group_segment_fixed_size 0')
    a.raw('  .amdhsa_kernarg_size 104')
    a.raw('  .amdhsa_user_sgpr_count 2')
    a.raw('  .amdhsa_user_sgpr_kernarg_segment_ptr 1')
    a.raw('  .amdhsa_system_sgpr_workgroup_id_x 1')
    a.raw('  .amdhsa_float_denorm_mode_32 3')
    a.raw('.end_amdhsa_kernel')
    return a

if __name__ == '__main__':
    cfg = Cfg()
    out = 'cdna_kernels/%s.s' % NAME
    for arg in sys.argv[1:]:
        k, val = arg.split('=')
        if k == 'out': out = val
        elif k == 'wpol': cfg.wpol = val.replace('+', ' ').replace('-', '')
        else: setattr(cfg, k, int(val))
    a = gen(cfg)
    open(out, 'w').write(a.text())
    print('wrote', out, a.count, 'instructions')
```
